```python
import torch

def _softmax(x, axis=-1):
    return torch.softmax(x, dim=axis)
def _gelu(x):
    return torch.nn.functional.gelu(x, approximate="tanh")
def _silu(x):
    return torch.nn.functional.silu(x)
def _sigmoid(x):
    return torch.sigmoid(x)
def _layernorm(x, axis=-1, eps=1e-5):
    m = x.mean(dim=axis, keepdim=True)
    v = x.var(dim=axis, keepdim=True, unbiased=False)
    return (x - m) / torch.sqrt(v + eps)
def _scatter_add(tgt, idx, src, axis=0):
    return tgt.clone().index_add_(axis, idx, src)
def _segment_sum(src, seg, n):
    out = torch.zeros((n,) + src.shape[1:], dtype=src.dtype)
    return out.index_add_(0, seg, src)
def _pad(x, pw):
    flat = tuple(v for pair in reversed(pw) for v in pair)
    return torch.nn.functional.pad(x, flat)

kernel_name = 'parallel_sum__ssm_conv_s5__dense_activation_silu__prompt'

def setup_inputs():

    _w = (lambda a: (lambda t: t.to(torch.bfloat16) if t.is_floating_point() else t)(torch.as_tensor(a)))
    def _A_setup():
        B, S, D = 1, 2048, 512
        P = D
        Lambda_re = -0.5 * (lambda _x: torch.exp(torch.as_tensor(_x)))((lambda *s: torch.randn(*s, dtype=torch.bfloat16) * 0.2)(P))
        Lambda_im = (lambda *s: torch.randn(*s, dtype=torch.bfloat16) * 0.8)(P) * 1.0
        B_re = (lambda *s: torch.randn(*s, dtype=torch.bfloat16) * 0.2)(P, D) * (D ** -0.5)
        B_im = (lambda *s: torch.randn(*s, dtype=torch.bfloat16) * 0.2)(P, D) * (D ** -0.5)
        C_re = (lambda *s: torch.randn(*s, dtype=torch.bfloat16) * 0.2)(D, P) * (P ** -0.5)
        C_im = (lambda *s: torch.randn(*s, dtype=torch.bfloat16) * 0.2)(D, P) * (P ** -0.5)
        log_dt = (lambda *s: torch.randn(*s, dtype=torch.bfloat16) * 0.2)(P) * 0.3 - 2.0
        Dskip = (lambda *s: torch.randn(*s, dtype=torch.bfloat16) * 0.05)(D)
        return {
            "x": _w((lambda *s: torch.randn(*s, dtype=torch.bfloat16) * 0.05)(B, S, D)),
            "Lambda_re": _w(Lambda_re),
            "Lambda_im": _w(Lambda_im),
            "B_re": _w(B_re),
            "B_im": _w(B_im),
            "C_re": _w(C_re),
            "C_im": _w(C_im),
            "log_dt": _w(log_dt),
            "Dskip": _w(Dskip),
        }
    _A_in = _A_setup()

    def _B_setup():
        B, S, D, F = 1, 2048, 512, 1376
        return {
            "x": _w((lambda *s: torch.randn(*s, dtype=torch.bfloat16) * 0.05)(B, S, D)),
            "w1": _w((lambda *s: torch.randn(*s, dtype=torch.bfloat16) * 0.8)(D, F) * (D ** -0.5)),
            "w2": _w((lambda *s: torch.randn(*s, dtype=torch.bfloat16) * 0.2)(F, D) * (F ** -0.5)),
        }
    _B_in = _B_setup()

    return {
        "A_x": _A_in["x"],
        "A_Lambda_re": _A_in["Lambda_re"],
        "A_Lambda_im": _A_in["Lambda_im"],
        "A_B_re": _A_in["B_re"],
        "A_B_im": _A_in["B_im"],
        "A_C_re": _A_in["C_re"],
        "A_C_im": _A_in["C_im"],
        "A_log_dt": _A_in["log_dt"],
        "A_Dskip": _A_in["Dskip"],
        "B_x": _B_in["x"],
        "B_w1": _B_in["w1"],
        "B_w2": _B_in["w2"],
    }

def reference(A_x, A_Lambda_re, A_Lambda_im, A_B_re, A_B_im, A_C_re, A_C_im, A_log_dt, A_Dskip, B_x, B_w1, B_w2):
    def _A_ref(x, Lambda_re, Lambda_im, B_re, B_im, C_re, C_im, log_dt, Dskip):
        Bsz, L, H = x.shape
        Lam = Lambda_re + 1j * Lambda_im
        Bmat = B_re + 1j * B_im
        Cmat = C_re + 1j * C_im
        dt = torch.exp(log_dt)
        Lam_bar = torch.exp(dt * Lam)
        B_bar = ((Lam_bar - 1.0) / Lam)[:, None] * Bmat
        Bu = torch.einsum("bld,pd->blp", x + 0j, B_bar)
        h = torch.zeros_like(Bu[:, 0, :])
        hs = []
        for t in range(L):
            h = Lam_bar[None, :] * h + Bu[:, t, :]
            hs.append(h)
        hseq = torch.stack(hs, 1)
        y = 2.0 * torch.einsum("blp,dp->bld", hseq, Cmat).real + x * Dskip[None, None, :]
        return y

    def _B_ref(x, w1, w2):
        h = torch.einsum("bsd,df->bsf", x, w1)
        h = _silu(h)
        out = torch.einsum("bsf,fd->bsd", h, w2)
        return out

    x = A_x
    xn = _layernorm(x, axis=-1)
    return x + _A_ref(xn, A_Lambda_re, A_Lambda_im, A_B_re, A_B_im, A_C_re, A_C_im, A_log_dt, A_Dskip) + _B_ref(xn, B_w1, B_w2)
```

```python
import re
TRANS = ("v_exp_f32","v_log_f32","v_rcp_f32","v_rsq_f32","v_sqrt_f32","v_sin_f32","v_cos_f32")
def regs_of(tok):
    tok = tok.strip()
    neg = tok.lstrip("-")
    m = re.fullmatch(r"\|?([vsa])(\d+)\|?", neg)
    if m: return [(m.group(1), int(m.group(2)))]
    m = re.fullmatch(r"([vsa])\[(\d+):(\d+)\]", neg)
    if m: return [(m.group(1), i) for i in range(int(m.group(2)), int(m.group(3))+1)]
    if neg == "vcc": return [("s","vcc")]
    if neg in ("vcc_lo","vcc_hi"): return [("s","vcc")]
    if neg == "m0": return [("s","m0")]
    if neg in ("exec","exec_lo","exec_hi"): return [("s","exec")]
    return []
class Ins:
    def __init__(self, text):
        self.text = text
        t = text.split(";")[0].strip()
        parts = t.split(None, 1)
        self.op = parts[0]
        rest = parts[1] if len(parts) > 1 else ""
        ops = [o.strip() for o in rest.split(",")] if rest else []
        self.mods = ""
        if ops:
            full = rest
            m = re.search(r"\s(op_sel|neg_lo|neg_hi|offen|offset|row_|quad_perm|off\b|sc0|sc1|nt\b|lds\b|bitop3|dst_sel|clamp|wave_|bound_ctrl)", " " + full)
            if m:
                cut = m.start()
                self.mods = full[cut:] if cut <= len(full) else ""
                full = full[:cut]
            ops = [o.strip() for o in full.split(",") if o.strip()]
        self.ops = ops
        op = self.op
        self.is_mfma = op.startswith("v_mfma")
        self.is_valu = op.startswith("v_") and not self.is_mfma
        self.is_salu = op.startswith("s_")
        self.is_vmem = op.startswith(("buffer_","global_"))
        self.is_ds = op.startswith("ds_")
        self.is_trans = op.replace("_e32","").replace("_e64","") in TRANS
        self.is_dpp = "_dpp" in op or "row_" in self.mods or "quad_perm" in self.mods
        self.is_perml = op.startswith("v_permlane")
        self.is_rdl = op.startswith(("v_readlane","v_readfirstlane"))
        self.lds_dma = self.is_vmem and re.search(r"\blds\b", self.mods) is not None
        d, s = [], []
        R = [regs_of(o) for o in ops]
        if self.is_mfma:
            d = R[0]; self.A = R[1]; self.B = R[2]; self.C = R[3]; s = R[1]+R[2]+R[3]
        elif self.is_valu:
            if op.startswith("v_cmp"):
                d = R[0]; s = sum(R[1:], [])
            elif self.is_perml:
                d = R[0]+R[1]; s = R[0]+R[1]
            elif op.startswith(("v_add_co","v_sub_co","v_addc_co","v_subb_co","v_div_scale")):
                d = R[0]+R[1]; s = sum(R[2:], [])
            else:
                d = R[0]; s = sum(R[1:], [])
                if op.startswith(("v_fmac","v_dot2c","v_pk_fmac","v_writelane")) or self.is_dpp: s = s + R[0]
        elif self.is_vmem:
            if "store" in op or "atomic" in op: s = sum(R, [])
            elif self.lds_dma: s = sum(R, []) + [("s","m0")]
            else: d = R[0]; s = sum(R[1:], [])
        elif self.is_ds:
            if op.startswith(("ds_read","ds_bpermute","ds_permute","ds_swizzle")): d = R[0]; s = sum(R[1:], [])
            else: s = sum(R, [])
        elif self.is_salu:
            if op.startswith(("s_cmp","s_cbranch","s_branch","s_waitcnt","s_barrier","s_nop","s_sleep","s_setprio","s_endpgm","s_bitcmp")): s = sum(R, [])
            elif R: d = R[0]; s = sum(R[1:], [])
        self.d = set(d); self.s = set(s)
        self.wide_store = self.is_vmem and "store" in op and op.endswith(("x3","x4"))
        if self.wide_store:
            self.sdata = set(R[0]) if op.startswith("buffer") else set(R[1])
    def states(self):
        if self.op == "s_nop": return int(self.ops[0], 0) + 1
        return 1
def need(p, c):
    n = 0
    vd = {r for r in p.d if r[0] in "va"}
    sd = {r for r in p.d if r[0] == "s"}
    if p.is_mfma:
        passes = 8 if "32x32" in p.op else 4
        full = {8:12, 4:8}[passes]
        if c.is_mfma:
            if vd & (set(c.A)|set(c.B)): n = max(n, full)
            if vd & set(c.C) and set(c.C) != vd: n = max(n, {8:10,4:6}[passes])
            if vd & c.d and not (set(c.C) == vd): n = max(n, full)
        elif (c.is_valu or c.is_vmem or c.is_ds):
            if vd & (c.s | c.d): n = max(n, full)
        if c.is_valu and set(p.C) & c.d: n = max(n, {8:7,4:3}[passes])
    if p.is_valu:
        if c.is_mfma and vd & c.s: n = max(n, 2)
        if c.is_valu:
            if p.is_trans and not c.is_trans and vd & c.s: n = max(n, 1)
            if p.is_trans and c.is_trans and vd & c.s: n = max(n, 1)
            if (c.is_dpp or c.is_perml) and vd & c.s: n = max(n, 2)
            if c.is_rdl and vd & c.s: n = max(n, 1)
            if sd & c.s: n = max(n, 4 if c.is_rdl else 2)
            if c.op.startswith("v_cndmask") and ("s","vcc") in sd and len(c.ops) == 4 and c.ops[3] == "vcc": n = max(n, 2)
        if c.is_vmem and sd & c.s: n = max(n, 5)
        if c.is_salu and sd & c.s: n = max(n, 1)
    if p.is_salu:
        if ("s","m0") in p.d and c.lds_dma: n = max(n, 1)
        if ("s","exec") in p.d and (c.is_dpp): n = max(n, 1)
    if p.wide_store and (c.is_valu or c.is_ds or (c.is_vmem and c.d)) and p.sdata & c.d: n = max(n, 2)
    return n
class Asm:
    def __init__(self):
        self.lines = []
        self.hist = []
        self.vm = []
        self.lg = []
        self.nnop = 0
    def raw(self, t): self.lines.append(t)
    def label(self, name):
        self.lines.append(name + ":")
    def comment(self, t): self.lines.append("    ; " + t)
    def __call__(self, text, tag=None):
        for t in text.strip().split("\n"):
            t = t.strip()
            if not t or t.startswith(";"): continue
            self.emit(t, tag)
    def emit(self, t, tag=None):
        c = Ins(t)
        dist = 0; pad = 0
        for p in reversed(self.hist):
            n = need(p, c)
            if n > dist: pad = max(pad, n - dist)
            dist += p.states()
            if dist >= 20: break
        while pad > 0:
            k = min(pad, 16)
            nop = Ins(f"s_nop {k-1}"); self.lines.append("    " + nop.text); self.hist.append(nop); pad -= k; self.nnop += 1
        self.lines.append("    " + t); self.hist.append(c)
        if len(self.hist) > 40: self.hist = self.hist[-40:]
        if c.is_vmem: self.vm.append(tag)
        if c.is_ds: self.lg.append(tag)
        if c.op == "s_waitcnt":
            m = re.search(r"vmcnt\((\d+)\)", t)
            if m: n = int(m.group(1)); self.vm = self.vm[len(self.vm)-n:] if n < len(self.vm) and n > 0 else ([] if n == 0 else self.vm)
            m = re.search(r"lgkmcnt\((\d+)\)", t)
            if m: n = int(m.group(1)); self.lg = self.lg[len(self.lg)-n:] if n < len(self.lg) and n > 0 else ([] if n == 0 else self.lg)
    def _cnt(self, lst, tags):
        if not isinstance(tags, (list, set)): tags = [tags]
        last = -1
        for i, t in enumerate(lst):
            if t in tags: last = i
        if last < 0: return None
        return len(lst) - 1 - last
    def wait(self, vm=None, lg=None):
        parts = []
        if vm is not None:
            n = self._cnt(self.vm, vm)
            if n is not None: parts.append(f"vmcnt({min(n,63)})")
        if lg is not None:
            n = self._cnt(self.lg, lg)
            if n is not None: parts.append(f"lgkmcnt({min(n,15)})")
        if parts: self.emit("s_waitcnt " + " ".join(parts))
    def fork(self):
        return (list(self.hist), list(self.vm), list(self.lg))
    def restore(self, st):
        self.hist, self.vm, self.lg = list(st[0]), list(st[1]), list(st[2])
    def text(self): return "\n".join(self.lines) + "\n"
```

```python
import sys
from asmlib import Asm
NAME = "parallel_sum__ssm_conv_s5__dense_activation_silu__prompt"
OPT = dict(stamps=0)
for a in sys.argv[2:]:
    k, v = a.split("="); OPT[k] = int(v)
STAMPS = OPT["stamps"]

WS_EPOCH = 0
WS_FLAG  = 0x1000
WS_STAT  = 0x4000
WS_EGR   = 0x10000
WS_STAMP = 0x40000
WS_HID   = 0x100000
WS_SIZE  = WS_HID + 64*150*1024
KS = 150
L_X, L_BW, L_W1 = 0, 65536, 98304
L_MISC = 155648
L_CS   = L_MISC
L_RB   = L_MISC + 4096
L_SEG  = L_MISC + 4608
L_F2, F2SZ = 0, 22528
L_S2, S2SZ = 90112, 16384
LDS_BYTES = 163840
sX, sB, sW1, sW2, sCR, sCI, sOUT, sWS = 40, 44, 48, 52, 56, 60, 64, 68
sW, sG, sMB, sJ, sRB, sNB, sTAG, sSB = 72, 73, 74, 75, 76, 77, 78, 79
sMASK = 38
sT = [80, 81, 82, 83, 3, 4, 5, 6, 7, 39]
srd = lambda r: f"s[{r}:{r+3}]"
vr = lambda a, n: f"v[{a}:{a+n-1}]"
STAMP_REGS = [84,86,88,90,92,94,96,98,100,14,16,18,20,26,28,30]

a = Asm()
nstamp = [0]
def stamp(i):
    if STAMPS: a(f"s_memtime s[{STAMP_REGS[i]}:{STAMP_REGS[i]+1}]")

def mksrd(r, p, size):
    a(f"s_mov_b32 s{r}, s{p}\ns_mov_b32 s{r+1}, s{p+1}\ns_mov_b32 s{r+2}, {hex(size)}\ns_mov_b32 s{r+3}, 0x20000")

def cmul(d, x, y):
    a(f"v_pk_mul_f32 {vr(d,2)}, {vr(x,2)}, {vr(y,2)} op_sel:[0,0] op_sel_hi:[0,1]")
    a(f"v_pk_fma_f32 {vr(d,2)}, {vr(x,2)}, {vr(y,2)}, {vr(d,2)} op_sel:[1,1,0] op_sel_hi:[1,0,1] neg_lo:[1,0,0]")
def cfma(d, x, y, z, t):
    a(f"v_pk_fma_f32 {vr(t,2)}, {vr(x,2)}, {vr(y,2)}, {vr(z,2)} op_sel:[0,0,0] op_sel_hi:[0,1,1]")
    a(f"v_pk_fma_f32 {vr(d,2)}, {vr(x,2)}, {vr(y,2)}, {vr(t,2)} op_sel:[1,1,0] op_sel_hi:[1,0,1] neg_lo:[1,0,0]")

def dpp_sum(v):
    for m in ("row_shr:1","row_shr:2","row_shr:4","row_shr:8"):
        a(f"v_add_f32_dpp v{v}, v{v}, v{v} {m} row_mask:0xf bank_mask:0xf bound_ctrl:0")
    a(f"v_add_f32_dpp v{v}, v{v}, v{v} row_bcast:15 row_mask:0xa bank_mask:0xf")
    a(f"v_add_f32_dpp v{v}, v{v}, v{v} row_bcast:31 row_mask:0xc bank_mask:0xf")

uid = [0]
def newlabel(p):
    uid[0] += 1; return f"L_{p}_{uid[0]}"

SPIN = 0x20000
def spin_tail(top, done):
    a(f"s_sleep 2\ns_sub_u32 s{sT[3]}, s{sT[3]}, 1\ns_cmp_lg_u32 s{sT[3]}, 0\ns_cbranch_scc1 {top}")

hdr = open("cdna_kernels/%s.s.ref" % NAME).read().split("; Override")[0]
a.raw(hdr.rstrip())
a.raw(f"; @launch grid=(256,1,1) block=(512,1,1) lds={LDS_BYTES}")
a.raw('.amdgcn_target "amdgcn-amd-amdhsa--gfx950"\n.text\n.globl %s_kernel\n.p2align 8\n.type %s_kernel,@function' % (NAME, NAME))
a.label(NAME + "_kernel")
a("s_cmp_ge_u32 s2, 0x100\ns_cbranch_scc1 L_end")
a("s_load_dwordx16 s[8:23], s[0:1], 0\ns_load_dwordx8 s[24:31], s[0:1], 64\ns_load_dwordx4 s[32:35], s[0:1], 96\ns_load_dwordx2 s[36:37], s[0:1], 112")
if STAMPS:
    a("s_memrealtime s[84:85]\ns_memtime s[86:87]")
a(f"""
v_lshrrev_b32 v2, 6, v0
v_and_b32 v1, 63, v0
v_readfirstlane_b32 s{sW}, v2
s_and_b32 s{sT[0]}, s2, 7
s_lshr_b32 s{sT[1]}, s2, 3
s_and_b32 s{sMB}, s{sT[0]}, 1
s_lshl_b32 s{sMB}, s{sMB}, 3
s_and_b32 s{sNB}, s{sT[1]}, 7
s_add_u32 s{sMB}, s{sMB}, s{sNB}
s_lshr_b32 s{sJ}, s{sT[0]}, 1
s_lshl_b32 s{sJ}, s{sJ}, 2
s_lshr_b32 s{sT[2]}, s{sT[1]}, 3
s_add_u32 s{sJ}, s{sJ}, s{sT[2]}
s_lshl_b32 s{sRB}, s{sT[0]}, 2
s_add_u32 s{sRB}, s{sRB}, s{sT[2]}
s_mul_i32 s{sSB}, s{sJ}, 3
s_lshl_b32 s{sT[2]}, s{sJ}, 1
s_add_u32 s{sT[2]}, s{sT[2]}, 11
s_min_u32 s{sSB}, s{sSB}, s{sT[2]}
s_mov_b32 s{sMASK}, 0xffff0000
s_and_b32 s{sG}, s{sW}, 3
""")
vL = 1
vH, vI, vF, vTmp, vTmp2, vTmp3 = 20, 21, 22, 23, 24, 25
vXA, vST, vSTA = 2, 28, 30
vROW = 128
a(f"""
v_lshrrev_b32 v{vH}, 5, v{vL}
v_and_b32 v{vI}, 31, v{vL}
v_bfe_u32 v{vF}, v{vL}, 1, 3
v_lshlrev_b32 v31, 4, v{vL}
""")
a(f"""
s_lshl_b32 s{sT[0]}, s{sG}, 1
v_xor_b32 v{vTmp}, v{vH}, v{vF}
v_xor_b32 v{vTmp}, s{sT[0]}, v{vTmp}
v_lshlrev_b32 v{vTmp}, 4, v{vTmp}
v_lshl_add_u32 v{vTmp}, v{vI}, 7, v{vTmp}
s_lshl_b32 s{sT[0]}, s{sG}, 12
v_add_u32 v{vXA}, s{sT[0]}, v{vTmp}
v_xor_b32 v{vXA+1}, 32, v{vXA}
v_xor_b32 v{vXA+2}, 64, v{vXA}
v_xor_b32 v{vXA+3}, 0x60, v{vXA}
""")
vTI = 26
a(f"""
v_bfe_u32 v{vTmp2}, v{vL}, 2, 1
v_bfe_u32 v{vTmp3}, v{vL}, 3, 2
v_and_b32 v{vTI}, 3, v{vL}
v_lshl_add_u32 v{vTI}, v{vTmp2}, 4, v{vTI}
v_lshl_add_u32 v{vTI}, v{vTmp3}, 2, v{vTI}
v_lshlrev_b32 v{vSTA}, 3, v{vTI}
""")
a(f"""
v_and_b32 v{vTmp2}, 7, v{vL}
v_lshrrev_b32 v{vTmp3}, 4, v{vL}
v_xor_b32 v27, v{vTmp2}, v{vTmp3}
v_lshlrev_b32 v27, 4, v27
""")
a("s_waitcnt lgkmcnt(0)")
a(f"s_load_dword s{sTAG}, s[36:37], {WS_EPOCH}")
mksrd(sX, 8, 0x200000)
a(f"""
s_lshl_b32 s{sT[0]}, s{sMB}, 7
s_lshl_b32 s{sT[1]}, s{sJ}, 3
s_add_u32 s{sT[0]}, s{sT[0]}, s{sT[1]}
s_add_u32 s{sT[4]}, s{sT[0]}, s{sW}
s_lshl_b32 s{sT[0]}, s{sT[4]}, 10
""")
a(f"buffer_load_dwordx4 {vr(vROW,4)}, v31, {srd(sX)}, s{sT[0]} offen", "row")
a(f"s_cmp_ge_u32 s{sG}, 2\ns_cselect_b32 s{sB}, s16, s14\ns_cselect_b32 s{sB+1}, s17, s15\ns_mov_b32 s{sB+2}, 0x80000\ns_mov_b32 s{sB+3}, 0x20000")
mksrd(sW1, 28, 512*1376*2)
mksrd(sW2, 30, 512*1376*2)
mksrd(sCR, 18, 0x80000)
mksrd(sCI, 20, 0x80000)
mksrd(sOUT, 32, 0x400000)
mksrd(sWS, 36, WS_SIZE)
a(f"s_cmp_ge_u32 s{sW}, 4\ns_cbranch_scc1 L_S")
st0 = a.fork()

def stats():
    e = 132
    for i in range(4):
        a(f"v_lshlrev_b32 v{e+2*i}, 16, v{vROW+i}\nv_and_b32 v{e+2*i+1}, s{sMASK}, v{vROW+i}")
    s = 140
    a(f"v_add_f32 v{s}, v{e}, v{e+1}\nv_add_f32 v{s+1}, v{e+2}, v{e+3}\nv_add_f32 v{s+2}, v{e+4}, v{e+5}\nv_add_f32 v{s+3}, v{e+6}, v{e+7}")
    a(f"v_add_f32 v{s}, v{s}, v{s+1}\nv_add_f32 v{s+2}, v{s+2}, v{s+3}\nv_add_f32 v{s}, v{s}, v{s+2}")
    dpp_sum(s)
    a(f"v_readlane_b32 s{sT[0]}, v{s}, 63")
    a(f"v_mov_b32 v{s+1}, 0x3b000000\nv_mul_f32 v{s+1}, s{sT[0]}, v{s+1}")
    for i in range(8): a(f"v_sub_f32 v{e+i}, v{e+i}, v{s+1}")
    a(f"v_mul_f32 v{s}, v{e}, v{e}\nv_mul_f32 v{s+2}, v{e+1}, v{e+1}")
    for i in range(2, 8): a(f"v_fmac_f32 v{s+(i&1)*2}, v{e+i}, v{e+i}")
    a(f"v_add_f32 v{s}, v{s}, v{s+2}")
    dpp_sum(s)
    a(f"""
    v_mul_f32 v{s}, 0x3b000000, v{s}
    v_cvt_pk_bf16_f32 v{s+2}, v{s}, v{s+1}
    v_lshlrev_b32 v{s}, 16, v{s+2}
    v_add_f32 v{s}, 0x3727c5ac, v{s}
    v_cvt_pk_bf16_f32 v{s}, v{s}, v{s}
    v_lshlrev_b32 v{s}, 16, v{s}
    v_sqrt_f32 v{s}, v{s}
    v_cvt_pk_bf16_f32 v{s+4}, v{s}, v{s+1}
    s_waitcnt lgkmcnt(0)
    s_add_u32 s{sTAG}, s{sTAG}, 0x9e3779b9
    v_mov_b32 v{s+5}, s{sTAG}
    s_lshl_b32 s{sT[0]}, s{sT[4]}, 3
    s_add_u32 s{sT[0]}, s{sT[0]}, {WS_STAT}
    v_mov_b32 v{s+6}, 0
    s_mov_b32 exec_lo, 0
    s_mov_b32 exec_hi, 0x80000000
    """)
    a(f"buffer_store_dwordx2 {vr(s+4,2)}, v{s+6}, {srd(sWS)}, s{sT[0]} offen sc1", "stat_st")
    a("s_mov_b64 exec, -1")

def stat_load(tag):
    a(f"buffer_load_dwordx2 {vr(vST,2)}, v{vSTA}, {srd(sWS)}, s{sT[5]} offen sc1", tag)
def stat_off():
    a(f"s_lshl_b32 s{sT[5]}, s{sMB}, 10\ns_lshl_b32 s{sT[0]}, s{sG}, 8\ns_add_u32 s{sT[5]}, s{sT[5]}, s{sT[0]}\ns_add_u32 s{sT[5]}, s{sT[5]}, {WS_STAT}")
def stat_check():
    top, done = newlabel("stp"), newlabel("std")
    a(f"s_mov_b32 s{sT[3]}, {SPIN}")
    a.wait(vm="stat_ld")
    a.label(top)
    a(f"v_cmp_ne_u32 vcc, s{sTAG}, v{vST+1}\ns_cmp_eq_u64 vcc, 0\ns_cbranch_scc1 {done}")
    st = a.fork()
    a("s_sleep 2")
    stat_load(None)
    a(f"s_waitcnt vmcnt(0)\ns_sub_u32 s{sT[3]}, s{sT[3]}, 1\ns_cmp_lg_u32 s{sT[3]}, 0\ns_cbranch_scc1 {top}")
    a.label(done)
    a.restore(st)

def colsum_ops(frags, vlo, vhi, first):
    ops = []
    for n, (r, b) in enumerate(frags):
        t0, t1 = 20 + 2*(n & 1), 21 + 2*(n & 1)
        ops.append(f"v_lshlrev_b32 v{t0}, 16, v{r}")
        ops.append(f"v_and_b32 v{t1}, s{sMASK}, v{r}")
        ops.append(f"v_add_f32 v{vlo+b}, v{vlo+b}, v{t0}")
        ops.append(f"v_add_f32 v{vhi+b}, v{vhi+b}, v{t1}")
    return ops

def p1_loop(nb, reads, mfma, dma, wset, vlo, vhi):
    a.wait(vm=("c", 0)); a("s_barrier")
    reads(0)
    pend_dma = []; pend_cs = []
    for n in range(32):
        c, s = n >> 2, n & 3
        if s == 0:
            if c + 3 < 8: pend_dma = dma(c + 3)
            pend_cs = colsum_ops([(wset(n) + 4*b + i, b) for b in range(nb) for i in range(4)], vlo, vhi, c == 0)
        if n + 1 < 32:
            if s == 3:
                a.wait(vm=("c", c + 1), lg=("r", n)); a("s_barrier")
                reads(n + 1)
            else:
                reads(n + 1); a.wait(lg=("r", n))
        else:
            a.wait(lg=("r", n))
        if n == 20: stat_load("stat_ld")
        ncs = (len(pend_cs) + (2 - s)) // (3 - s) if s < 3 else 0
        per = (ncs + nb - 1) // nb
        nd = (len(pend_dma) + (2 - s)) // (3 - s) if s < 3 else 0
        for b in range(nb):
            mfma(n, b)
            if nd > 0 and pend_dma:
                pend_dma.pop(0)(); nd -= 1
            for _ in range(min(per, ncs)):
                a(pend_cs.pop(0)); ncs -= 1
        assert s < 2 or (not pend_cs and not pend_dma), (n, len(pend_cs), len(pend_dma))

def cs_exchange(nb, stream, vlo, vhi, dst):
    for b in range(nb):
        a(f"v_add_f32 v{vlo+b}, v{vlo+b}, v{vhi+b}")
    for b in range(nb):
        a(f"v_mov_b32 v{vhi+b}, v{vlo+b}")
    for b in range(nb):
        a(f"v_permlane32_swap_b32 v{vlo+b}, v{vhi+b}")
    for b in range(nb):
        a(f"v_add_f32 v{20+b}, v{vlo+b}, v{vhi+b}")
    a(f"""
    v_and_b32 v24, 31, v{vL}
    v_lshlrev_b32 v24, 4, v24
    v_add_u32 v24, {L_CS + stream*2048}, v24
    s_lshl_b32 s{sT[0]}, s{sG}, 9
    v_add_u32 v25, s{sT[0]}, v24
    ds_write_b128 v25, v[20:23]
    s_waitcnt lgkmcnt(0)
    s_barrier
    """)
    for g in range(4): a(f"ds_read_b128 {vr(32+4*g,4)}, v24 offset:{512*g}", "cs")

def cs_finish(nb, dst):
    a.wait(lg="cs")
    for b in range(nb):
        a(f"v_add_f32 v{32+b}, v{32+b}, v{36+b}\nv_add_f32 v{40+b}, v{40+b}, v{44+b}")
    for b in range(nb):
        a(f"v_add_f32 v{32+b}, v{32+b}, v{40+b}")
    for b in range(nb):
        a(f"v_and_b32 v{36+b}, s{sMASK}, v{32+b}\nv_sub_f32 v{32+b}, v{32+b}, v{36+b}\nv_cvt_pk_bf16_f32 v{dst+4*b}, v{32+b}, v{36+b}")
        a(f"v_mov_b32 v{dst+4*b+1}, 0\nv_mov_b32 v{dst+4*b+2}, 0\nv_mov_b32 v{dst+4*b+3}, 0")

def xaug(dst):
    a(f"""
    v_and_b32 v{dst}, s{sMASK}, v{vST}
    v_cvt_pk_bf16_f32 v{dst}, -v{dst}, -v{dst}
    v_cmp_gt_u32 vcc, 32, v{vL}
    v_mov_b32 v{dst+1}, 0
    v_mov_b32 v{dst+2}, 0
    v_mov_b32 v{dst+3}, 0
    v_cndmask_b32 v{dst}, 0, v{dst}, vcc
    """)

def flag_store(stream):
    a(f"""
    s_lshl_b32 s{sT[0]}, s{sMB}, 1
    s_lshr_b32 s{sT[1]}, s{sG}, 1
    s_add_u32 s{sT[0]}, s{sT[0]}, s{sT[1]}
    s_lshl_b32 s{sT[0]}, s{sT[0]}, 5
    s_lshl_b32 s{sT[1]}, s{sJ}, 1
    s_add_u32 s{sT[0]}, s{sT[0]}, s{sT[1]}
    s_and_b32 s{sT[1]}, s{sG}, 1
    s_add_u32 s{sT[0]}, s{sT[0]}, s{sT[1]}
    s_lshl_b32 s{sT[0]}, s{sT[0]}, 2
    s_add_u32 s{sT[0]}, s{sT[0]}, {WS_FLAG + stream*4096}
    v_mov_b32 v20, s{sTAG}
    v_mov_b32 v21, 0
    """)
    a.wait(vm="hid_st")
    a("s_mov_b64 exec, 1")
    a(f"buffer_store_dword v20, v21, {srd(sWS)}, s{sT[0]} offen sc1", "flag_st")
    a("s_mov_b64 exec, -1")

def flag_poll(stream):
    top, done = newlabel("fp"), newlabel("fd")
    a(f"""
    s_lshl_b32 s{sT[0]}, s{sRB}, 7
    s_add_u32 s{sT[0]}, s{sT[0]}, {WS_FLAG + stream*4096}
    v_and_b32 v20, 31, v{vL}
    v_lshlrev_b32 v20, 2, v20
    s_mov_b32 s{sT[3]}, {SPIN}
    """)
    a.label(top)
    a(f"buffer_load_dword v21, v20, {srd(sWS)}, s{sT[0]} offen sc1")
    a(f"s_waitcnt vmcnt(0)\nv_cmp_ne_u32 vcc, s{sTAG}, v21\ns_and_b32 s{sT[1]}, vcc_lo, s{sT[6]}\ns_cbranch_scc0 {done}")
    a(f"s_sleep 2\ns_sub_u32 s{sT[3]}, s{sT[3]}, 1\ns_cmp_lg_u32 s{sT[3]}, 0\ns_cbranch_scc1 {top}")
    a.label(done)

ACC2, ABUF, DA, BT = 64, 16, 6, 216
def p2_loop(nsteps, held, heldreg, breads, aoff):
    def aload(n):
        sg, imm, va = aoff(n)
        r = ABUF + 8*(n % DA)
        a(f"buffer_load_dwordx4 {vr(r,4)}, v{va}, {srd(sWS)}, s{sg} offen offset:{imm} sc1", ("a", n))
        a(f"buffer_load_dwordx4 {vr(r+4,4)}, v{va+1}, {srd(sWS)}, s{sg} offen offset:{imm} sc1", ("a", n))
    for n in range(min(DA, nsteps)): aload(n)
    for n in range(nsteps):
        a.wait(vm=("a", n))
        if held <= n + 1 < nsteps: breads(n + 1, BT + 8*((n + 1) & 1))
        if n >= held: a.wait(lg=("b", n))
        w = heldreg + 8*n if n < held else BT + 8*(n & 1)
        r = ABUF + 8*(n % DA)
        for tb in range(2):
            for db in range(2):
                acc = ACC2 + 16*(2*db + tb)
                c = "0" if n == 0 else vr(acc, 16)
                a(f"v_mfma_f32_32x32x16_bf16 {vr(acc,16)}, {vr(w+4*db,4)}, {vr(r+4*tb,4)}, {c}")
        if n + DA < nsteps: aload(n + DA)

def hid_voffs():
    a(f"v_lshlrev_b32 v2, 4, v{vL}\nv_add_u32 v3, {KS*1024}, v2")

def resid_load():
    a(f"""
    v_lshrrev_b32 v232, 4, v0
    v_and_b32 v233, 15, v0
    v_bfe_u32 v234, v232, 2, 1
    v_lshrrev_b32 v235, 3, v232
    v_and_b32 v236, 3, v232
    v_lshl_add_u32 v236, v234, 4, v236
    v_lshl_add_u32 v236, v235, 2, v236
    v_lshlrev_b32 v234, 10, v236
    v_lshl_add_u32 v234, v233, 3, v234
    v_lshlrev_b32 v235, 3, v236
    s_lshl_b32 s{sT[0]}, s{sRB}, 16
    s_lshl_b32 s{sT[1]}, s{sNB}, 7
    s_add_u32 s{sT[0]}, s{sT[0]}, s{sT[1]}
    s_add_u32 s{sT[2]}, s{sT[0]}, 0x8000
    """)
    a(f"buffer_load_dwordx2 v[240:241], v234, {srd(sX)}, s{sT[0]} offen", "res")
    a(f"buffer_load_dwordx2 v[242:243], v234, {srd(sX)}, s{sT[2]} offen", "res")
    a(f"s_lshl_b32 s{sT[0]}, s{sRB}, 9\ns_add_u32 s{sT[0]}, s{sT[0]}, {WS_STAT}")
    a(f"buffer_load_dword v244, v235, {srd(sWS)}, s{sT[0]} offen sc1", "res")
    a(f"buffer_load_dword v245, v235, {srd(sWS)}, s{sT[0]} offen offset:256 sc1", "res")
    a(f"v_lshlrev_b32 v237, 3, v233\nv_add_u32 v237, s{sT[1]}, v237")
    a(f"global_load_dwordx2 v[246:247], v237, s[24:25]", "res")

def dump(base_expr_sgpr):
    a(f"""
    v_and_b32 v4, 31, v{vL}
    v_lshrrev_b32 v5, 5, v{vL}
    v_and_b32 v6, 7, v{vL}
    v_xor_b32 v5, v5, v6
    v_lshlrev_b32 v5, 4, v5
    v_lshl_add_u32 v4, v4, 8, v5
    v_add_u32 v4, s{base_expr_sgpr}, v4
    v_xor_b32 v5, 32, v4
    v_xor_b32 v6, 64, v4
    v_xor_b32 v7, 0x60, v4
    """)
    for db in range(2):
        for tb in range(2):
            for g in range(4):
                a(f"ds_write_b128 v{4+g}, {vr(ACC2+16*(2*db+tb)+4*g,4)} offset:{tb*8192+db*128}")

vWA, vDX = 6, 10
a(f"""
v_bfe_u32 v{vTmp}, v{vL}, 3, 2
v_lshl_add_u32 v{vTmp}, v{vH}, 4, v{vTmp}
v_lshl_add_u32 v{vDX}, v{vTmp}, 10, v27
v_add_u32 v{vDX+2}, 0x1800, v{vDX}
v_xor_b32 v{vDX+1}, 64, v{vDX}
v_add_u32 v{vDX+1}, 0xc00, v{vDX+1}
v_add_u32 v{vDX+3}, 0x1800, v{vDX+1}
s_lshl_b32 s{sT[7]}, s{sMB}, 17
s_lshl_b32 s{sT[0]}, s{sG}, 15
s_add_u32 s{sT[7]}, s{sT[7]}, s{sT[0]}
s_lshl_b32 s{sT[8]}, s{sG}, 12
""")
def dmaF(c):
    def one(i):
        def f():
            if i == 0: a(f"s_add_u32 m0, s{sT[8]}, {L_X + (c&3)*16384}\ns_add_u32 s{sT[9]}, s{sT[7]}, {c*128}")
            a(f"buffer_load_dwordx4 v{vDX+i}, {srd(sX)}, s{sT[9]} offen offset:{1024*i} lds", ("c", c))
        return f
    return [one(i) for i in range(4)]
for f in dmaF(0): f()
a("s_barrier")
for f in dmaF(1): f()
a(f"""
v_bfe_u32 v{vTmp}, v{vL}, 2, 2
v_lshl_add_u32 v{vTmp}, v{vH}, 3, v{vTmp}
v_lshlrev_b32 v{vTmp}, 6, v{vTmp}
v_bfe_u32 v{vTmp2}, v{vL}, 4, 1
v_lshl_add_u32 v{vTmp}, v{vTmp2}, 5, v{vTmp}
v_and_b32 v{vTmp2}, 1, v{vL}
v_lshl_add_u32 v{vTmp}, v{vTmp2}, 4, v{vTmp}
v_bfe_u32 v{vTmp2}, v{vL}, 1, 1
v_lshl_add_u32 v{vTmp}, v{vTmp2}, 3, v{vTmp}
""")
for s in range(4):
    a(f"s_xor_b32 s{sT[0]}, s{sG}, {s}\ns_mul_i32 s{sT[0]}, s{sT[0]}, 3072\ns_add_u32 s{sT[0]}, s{sT[0]}, {L_W1}\nv_add_u32 v{vWA+s}, s{sT[0]}, v{vTmp}")
for r in range(14, 20): a(f"v_mov_b32 v{r}, 0")
stat_off()
a.wait(vm="row")
stats()
a("s_barrier")
for f in dmaF(2): f()
stamp(2)
ACC1 = 80
wsetF = lambda n: (40, 52, 64, 52)[n & 3]
def readsF(n):
    c, s = n >> 2, n & 3
    a(f"ds_read_b128 {vr(32+4*(n&1),4)}, v{vXA+s} offset:{(c&3)*16384}", ("r", n))
    for b in range(3):
        for u in range(2):
            a(f"ds_read_b64_tr_b16 {vr(wsetF(n)+4*b+2*u,2)}, v{vWA+s} offset:{(c&3)*12288+b*1024+u*256}", ("r", n))
def mfmaF(n, b):
    acc = vr(ACC1+16*b, 16)
    a(f"v_mfma_f32_32x32x16_bf16 {acc}, {vr(wsetF(n)+4*b,4)}, {vr(32+4*(n&1),4)}, {'0' if n == 0 else acc}")
p1_loop(3, readsF, mfmaF, dmaF, wsetF, 14, 17)
stamp(3)
cs_exchange(3, 0, 14, 17, 52)
a(f"""
v_lshrrev_b32 v4, 3, v{vL}
v_and_b32 v5, 7, v{vL}
v_bfe_u32 v6, v{vL}, 4, 1
v_lshlrev_b32 v6, 2, v6
v_xor_b32 v5, v5, v6
v_lshlrev_b32 v5, 4, v5
v_lshl_add_u32 v4, v4, 10, v5
s_mul_i32 s{sT[7]}, s{sG}, {352*1024}
s_lshl_b32 s{sT[0]}, s{sNB}, 7
s_add_u32 s{sT[7]}, s{sT[7]}, s{sT[0]}
s_mul_i32 s{sT[8]}, s{sG}, {F2SZ}
""")
def w2dma(i):
    a(f"s_add_u32 m0, s{sT[8]}, {L_F2 + (i % 22)*1024}\ns_add_u32 s{sT[9]}, s{sT[7]}, {i*8192}")
    a(f"buffer_load_dwordx4 v4, {srd(sW2)}, s{sT[9]} offen lds", ("w", i // 22))
wq = list(range(22))
for _ in range(2): w2dma(wq.pop(0))
stat_check()
xaug(48)
cs_finish(3, 52)
for b in range(3):
    acc = vr(ACC1+16*b, 16)
    a(f"v_mfma_f32_32x32x16_bf16 {acc}, {vr(52+4*b,4)}, v[48:51], {acc}")
a(f"""
v_lshlrev_b32 v34, 16, v{vST}
v_rcp_f32 v32, v34
v_mul_f32 v32, 0xbfb8aa3b, v32
s_lshl_b32 s{sT[0]}, s{sMB}, 2
s_add_u32 s{sT[0]}, s{sT[0]}, s{sG}
s_mul_i32 s{sT[0]}, s{sT[0]}, {KS*1024}
s_lshl_b32 s{sT[1]}, s{sSB}, 11
s_add_u32 s{sT[0]}, s{sT[0]}, s{sT[1]}
s_add_u32 s{sT[4]}, s{sT[0]}, {WS_HID}
s_add_u32 s{sT[5]}, s{sT[4]}, 4096
s_cmp_ge_u32 s{sJ}, 11
s_cselect_b32 s{sT[0]}, 0x7ff00000, 0
v_add_u32 v5, s{sT[0]}, v31
""")
for b in range(3):
    A = ACC1 + 16*b
    for f in range(2):
        z = 36 + 8*f * 1
        o = 56 + 4*((2*b+f) & 3)
        for m in range(4):
            a(f"v_pk_mul_f32 {vr(z+2*m,2)}, {vr(A+8*f+2*m,2)}, v[32:33] op_sel_hi:[1,0]")
        for m in range(8): a(f"v_exp_f32 v{z+m}, v{z+m}")
        for m in range(4):
            a(f"v_pk_fma_f32 {vr(z+2*m,2)}, {vr(z+2*m,2)}, v[34:35], v[34:35] op_sel_hi:[1,0,0]")
        for m in range(8): a(f"v_rcp_f32 v{z+m}, v{z+m}")
        for m in range(4):
            a(f"v_pk_mul_f32 {vr(z+2*m,2)}, {vr(z+2*m,2)}, {vr(A+8*f+2*m,2)}")
        for m in range(4):
            a(f"v_cvt_pk_bf16_f32 v{o+m}, v{z+2*m}, v{z+2*m+1}")
        sg, imm = (sT[4], b*2048 + f*1024) if b < 2 else (sT[5], f*1024)
        a(f"buffer_store_dwordx4 {vr(o,4)}, v{31 if b < 2 else 5}, {srd(sWS)}, s{sg} offen offset:{imm} sc1", "hid_st")
        for _ in range(2):
            if wq: w2dma(wq.pop(0))
    if b == 0: a("s_barrier")
stamp(4)
while wq: w2dma(wq.pop(0))
flag_store(0)
stamp(5)
a(f"""
v_lshrrev_b32 v7, 5, v{vL}
v_bfe_u32 v8, v{vL}, 2, 2
v_lshl_add_u32 v7, v7, 3, v8
v_lshlrev_b32 v7, 7, v7
v_bfe_u32 v8, v{vL}, 3, 1
v_lshl_add_u32 v7, v8, 6, v7
v_bfe_u32 v8, v{vL}, 4, 1
v_lshl_add_u32 v7, v8, 5, v7
v_and_b32 v8, 3, v{vL}
v_lshl_add_u32 v7, v8, 3, v7
v_add_u32 v5, s{sT[8]}, v7
v_xor_b32 v6, 64, v5
""")
def breadsF(n, dst):
    for db in range(2):
        for u in range(2):
            a(f"ds_read_b64_tr_b16 {vr(dst+4*db+2*u,2)}, v{5+db} offset:{L_F2 + (n % 11)*2048 + u*512}", ("b", n))
a.wait(vm=("w", 0))
for n in range(11):
    breadsF(n, 128 + 8*n)
a("s_waitcnt lgkmcnt(0)")
stamp(6)
for i in range(22, 44): w2dma(i)
hid_voffs()
a(f"""
s_mov_b32 s{sT[6]}, 0x000000ff
s_cmp_eq_u32 s{sG}, 1
s_cselect_b32 s{sT[6]}, 0x0000ffc0, s{sT[6]}
s_cmp_eq_u32 s{sG}, 2
s_cselect_b32 s{sT[6]}, 0x003fc000, s{sT[6]}
s_cmp_eq_u32 s{sG}, 3
s_cselect_b32 s{sT[6]}, 0xffc00000, s{sT[6]}
""")
flag_poll(0)
stamp(7)
a(f"""
s_mul_i32 s{sT[4]}, s{sRB}, {2*KS*1024}
s_mul_i32 s{sT[0]}, s{sG}, {22*1024}
s_add_u32 s{sT[4]}, s{sT[4]}, s{sT[0]}
s_add_u32 s{sT[4]}, s{sT[4]}, {WS_HID}
s_cmp_eq_u32 s{sG}, 3
s_cselect_b32 s{sT[0]}, 0x7ff00000, 0
v_add_u32 v8, s{sT[0]}, v2
v_add_u32 v9, s{sT[0]}, v3
""")
def aoffF(n):
    if n % 4 == 0 and n > 0: a(f"s_add_u32 s{sT[4]}, s{sT[4]}, 4096")
    return sT[4], (n % 4)*1024, (8 if n >= 20 else 2)
p2_loop(22, 11, 128, breadsF, aoffF)
stamp(8)
resid_load()
dump(sT[8])
a("s_branch L_final")
stF = a.fork()

a.restore(st0)
a.raw(".p2align 6")
a.label("L_S")
vBA, vDB, vDW = 6, 10, 12
a(f"""
v_lshrrev_b32 v{vTmp}, 3, v{vL}
v_lshl_add_u32 v{vDB}, v{vTmp}, 10, v27
v_xor_b32 v{vDB+1}, 64, v{vDB}
v_add_u32 v{vDB+1}, 0x1c00, v{vDB+1}
v_lshrrev_b32 v{vTmp}, 2, v{vL}
v_mul_u32_u24 v{vTmp}, 2752, v{vTmp}
v_and_b32 v{vTmp2}, 3, v{vL}
v_lshl_add_u32 v{vDW}, v{vTmp2}, 4, v{vTmp}
s_lshl_b32 s{sT[7]}, s{sJ}, 15
s_and_b32 s{sT[0]}, s{sG}, 1
s_lshl_b32 s{sT[0]}, s{sT[0]}, 14
s_add_u32 s{sT[7]}, s{sT[7]}, s{sT[0]}
s_mul_i32 s{sT[6]}, s{sG}, {16*2752}
s_lshl_b32 s{sT[0]}, s{sSB}, 6
s_add_u32 s{sT[6]}, s{sT[6]}, s{sT[0]}
s_lshl_b32 s{sT[8]}, s{sG}, 11
s_mul_i32 s{sT[2]}, s{sG}, 3072
""")
def dmaS(c):
    def bw(i):
        def f():
            a(f"s_add_u32 m0, s{sT[8]}, {L_BW + (c&3)*8192}\ns_add_u32 s{sT[9]}, s{sT[7]}, {c*128}")
            a(f"buffer_load_dwordx4 v{vDB+i}, {srd(sB)}, s{sT[9]} offen offset:{1024*i} lds", ("c", c))
        return f
    def w1(b):
        def f():
            a(f"s_add_u32 m0, s{sT[2]}, {L_W1 + (c&3)*12288 + 960*b}\ns_add_u32 s{sT[9]}, s{sT[6]}, {c*64*2752}")
            a(f"buffer_load_dwordx4 v{vDW}, {srd(sW1)}, s{sT[9]} offen offset:{64*b} lds", ("c", c))
        return f
    return [w1(0), w1(1), w1(2), bw(0), bw(1)]
for f in dmaS(0): f()
a(f"s_lshl_b32 s{sT[0]}, s{sJ}, 6\nv_lshl_add_u32 v{vTmp}, v{vI}, 1, s{sT[0]}")
a(f"global_load_ushort v150, v{vTmp}, s[10:11]", "par")
a(f"global_load_ushort v151, v{vTmp}, s[12:13]", "par")
a(f"global_load_ushort v152, v{vTmp}, s[22:23]", "par")
a("s_barrier")
for f in dmaS(1): f()
a(f"s_lshl_b32 s{sT[0]}, s{sG}, 12\ns_sub_u32 s{sT[0]}, {L_BW}, s{sT[0]}")
for s in range(4): a(f"v_add_u32 v{vBA+s}, s{sT[0]}, v{vXA+s}")
for r in range(14, 20): a(f"v_mov_b32 v{r}, 0")
stat_off()
a.wait(vm="row")
stats()
a("s_barrier")
for f in dmaS(2): f()
vLam, vK, vL16, vL128, vL256, vPW = 112, 114, 116, 118, 120, 122
a.wait(vm="par")
a(f"""
v_lshlrev_b32 v150, 16, v150
v_lshlrev_b32 v151, 16, v151
v_lshlrev_b32 v152, 16, v152
v_mul_f32 v152, 0x3fb8aa3b, v152
v_exp_f32 v152, v152
v_cvt_pk_bf16_f32 v152, v152, v152
v_lshlrev_b32 v152, 16, v152
v_mul_f32 v153, v152, v150
v_mul_f32 v154, v152, v151
v_mul_f32 v153, 0x3fb8aa3b, v153
v_exp_f32 v153, v153
v_mul_f32 v154, 0.15915494, v154
v_rndne_f32 v155, v154
v_sub_f32 v154, v154, v155
v_cos_f32 v155, v154
v_sin_f32 v156, v154
v_mul_f32 v{vLam}, v153, v155
v_mul_f32 v{vLam+1}, v153, v156
v_add_f32 v153, -1.0, v{vLam}
v_mul_f32 v154, v150, v150
v_fmac_f32 v154, v151, v151
v_rcp_f32 v154, v154
v_mul_f32 v155, v153, v150
v_fmac_f32 v155, v{vLam+1}, v151
v_mul_f32 v156, v{vLam+1}, v150
v_fma_f32 v156, -v153, v151, v156
v_add_f32 v154, v154, v154
v_mul_f32 v{vK}, v155, v154
v_mul_f32 v{vK+1}, v156, v154
""")
cmul(150, vLam, vLam); cmul(152, 150, 150); cmul(150, 152, 152); cmul(vL16, 150, 150)
cmul(150, vL16, vL16)
cmul(152, 150, 150)
cmul(vL128, 152, 152); cmul(vL256, vL128, vL128)
a(f"""
v_cmp_gt_u32 vcc, 32, v{vL}
v_cndmask_b32 v154, v{vL16}, 1.0, vcc
v_cndmask_b32 v155, v{vL16+1}, 0, vcc
s_bitcmp1_b32 s{sG}, 0
s_cselect_b64 vcc, -1, 0
v_cndmask_b32 v150, 1.0, v150, vcc
v_cndmask_b32 v151, 0, v151, vcc
s_bitcmp1_b32 s{sG}, 1
s_cselect_b64 vcc, -1, 0
v_cndmask_b32 v152, 1.0, v152, vcc
v_cndmask_b32 v153, 0, v153, vcc
""")
cmul(156, 154, 150); cmul(vPW, 156, 152)
stamp(2)
wsetS = lambda n: (40, 52, 64, 52)[n & 3]
def readsS(n):
    c, s = n >> 2, n & 3
    a(f"ds_read_b128 {vr(32+4*(n&1),4)}, v{vXA+s} offset:{(c&3)*16384}", ("r", n))
    for b in range(2):
        a(f"ds_read_b128 {vr(wsetS(n)+4*b,4)}, v{vBA+s} offset:{(c&3)*8192+b*4096}", ("r", n))
def mfmaS(n, b):
    acc = vr(ACC1+16*b, 16)
    a(f"v_mfma_f32_32x32x16_bf16 {acc}, {vr(32+4*(n&1),4)}, {vr(wsetS(n)+4*b,4)}, {'0' if n == 0 else acc}")
p1_loop(2, readsS, mfmaS, dmaS, wsetS, 14, 17)
stamp(3)
cs_exchange(2, 1, 14, 17, 52)
a(f"""
v_lshrrev_b32 v4, 3, v{vL}
v_lshl_add_u32 v4, v4, 10, v27
v_xor_b32 v5, 64, v4
s_lshl_b32 s{sT[7]}, s{sNB}, 16
s_lshl_b32 s{sT[0]}, s{sG}, 8
s_add_u32 s{sT[7]}, s{sT[7]}, s{sT[0]}
s_lshl_b32 s{sT[8]}, s{sG}, 14
s_add_u32 s{sT[8]}, s{sT[8]}, {L_S2}
""")
def cdma(kh, part, i):
    a(f"s_add_u32 m0, s{sT[8]}, {part*8192 + i*1024}\ns_add_u32 s{sT[9]}, s{sT[7]}, {i*8192 + kh*128}")
    a(f"buffer_load_dwordx4 v{4+(i&1)}, {srd(sCI if part else sCR)}, s{sT[9]} offen lds", ("w", kh))
cq = [(0, p, i) for p in range(2) for i in range(8)]
for _ in range(2): cdma(*cq.pop(0))
stat_check()
xaug(48)
a(f"""
v_lshlrev_b32 v60, 16, v{vST}
v_rcp_f32 v60, v60
s_lshl_b32 s{sT[0]}, s{sG}, 7
s_add_u32 s{sT[0]}, s{sT[0]}, {L_RB}
v_lshl_add_u32 v61, v{vTI}, 2, s{sT[0]}
v_lshrrev_b32 v62, 5, v{vL}
v_lshl_add_u32 v62, v62, 6, s{sT[0]}
""")
a("ds_write_b32 v61, v60", "rw")
cs_finish(2, 52)
for b in range(2):
    acc = vr(ACC1+16*b, 16)
    a(f"v_mfma_f32_32x32x16_bf16 {acc}, v[48:51], {vr(52+4*b,4)}, {acc}")
a.wait(lg="rw")
vR, vU = 32, 192
for q in range(4): a(f"ds_read_b128 {vr(vR+4*q,4)}, v62 offset:{16*q}", "rr")
for _ in range(2): cdma(*cq.pop(0))
for t in range(16):
    e, o = t & ~1, t & 1
    a(f"v_pk_mul_f32 {vr(vU+2*t,2)}, {vr(vK,2)}, {vr(ACC1+e,2)} op_sel:[0,{o}] op_sel_hi:[1,{o}]")
    a(f"v_pk_fma_f32 {vr(vU+2*t,2)}, {vr(vK,2)}, {vr(ACC1+16+e,2)}, {vr(vU+2*t,2)} op_sel:[1,{o},0] op_sel_hi:[0,{o},1] neg_lo:[1,0,0]")
a.wait(lg="rr")
for t in range(16):
    e, o = t & ~1, t & 1
    a(f"v_pk_mul_f32 {vr(vU+2*t,2)}, {vr(vU+2*t,2)}, {vr(vR+e,2)} op_sel:[0,{o}] op_sel_hi:[1,{o}]")
for _ in range(2): cdma(*cq.pop(0))
cur = vU
for t in range(1, 16):
    d = 48 + 2*(t & 1)
    cfma(d, vLam, cur, vU + 2*t, 52)
    cur = d
a(f"""
v_and_b32 v54, 31, v{vL}
v_lshlrev_b32 v54, 3, v54
v_add_u32 v54, {L_SEG}, v54
s_lshl_b32 s{sT[0]}, s{sG}, 9
v_lshl_add_u32 v55, v{vL}, 3, s{sT[0]}
v_add_u32 v55, {L_SEG}, v55
ds_write_b64 v55, {vr(cur,2)}
s_waitcnt lgkmcnt(0)
s_barrier
""")
for sgi in range(8): a(f"ds_read_b64 {vr(56+2*sgi,2)}, v54 offset:{256*sgi}", "seg")
a(f"s_lshl_b32 s{sT[0]}, s{sG}, 1\nv_lshrrev_b32 v53, 5, v{vL}\nv_add_u32 v53, s{sT[0]}, v53\nv_mov_b32 v124, 0\nv_mov_b32 v125, 0")
a.wait(lg="seg")
cur = 56
for jx in range(1, 9):
    if jx < 8:
        a(f"v_cmp_eq_u32 vcc, {jx}, v53\nv_cndmask_b32 v124, v124, v{cur}, vcc\nv_cndmask_b32 v125, v125, v{cur+1}, vcc")
        d = 48 + 2*(jx & 1) if jx < 7 else 72
        cfma(d, vL16, cur, 56 + 2*jx, 56 + 2*jx)
        cur = d
lbl = newlabel("noe")
a(f"""
v_mov_b32 v74, s{sTAG}
v_mov_b32 v75, s{sTAG}
s_lshl_b32 s{sT[0]}, s{sMB}, 13
s_lshl_b32 s{sT[1]}, s{sJ}, 9
s_add_u32 s{sT[4]}, s{sT[0]}, s{sT[1]}
s_add_u32 s{sT[0]}, s{sT[4]}, {WS_EGR}
s_cmp_eq_u32 s{sG}, 0
s_cselect_b32 s{sT[1]}, 0, 0x7ff00000
v_add_u32 v76, s{sT[1]}, v31
s_mov_b32 exec_hi, 0
""")
a(f"buffer_store_dwordx4 v[72:75], v76, {srd(sWS)}, s{sT[0]} offen sc1", "e_st")
a("s_mov_b64 exec, -1")
stamp(4)
while cq: cdma(*cq.pop(0))
a(f"""
v_lshrrev_b32 v20, 5, v{vL}
v_bfe_u32 v21, v{vL}, 1, 3
v_xor_b32 v20, v20, v21
v_lshlrev_b32 v20, 4, v20
v_and_b32 v21, 31, v{vL}
v_lshl_add_u32 v20, v21, 7, v20
v_add_u32 v6, s{sT[8]}, v20
v_xor_b32 v7, 32, v6
v_xor_b32 v8, 64, v6
v_xor_b32 v9, 0x60, v6
""")
def breadsS(n, dst):
    jl, part, half = (n >> 2) & 1, (n >> 1) & 1, n & 1
    for db in range(2):
        a(f"ds_read_b128 {vr(dst+4*db,4)}, v{6+2*jl+half} offset:{part*8192+db*4096}", ("b", n))
a.wait(vm=("w", 0))
for n in range(8): breadsS(n, 128 + 8*n)
a("s_waitcnt lgkmcnt(0)")
cq = [(1, p, i) for p in range(2) for i in range(8)]
for _ in range(12): cdma(*cq.pop(0))
stamp(5)
a(f"""
v_lshrrev_b32 v21, 5, v{vL}
v_sub_u32 v21, s{sMB}, v21
v_subrev_u32 v21, 1, v21
v_and_b32 v20, 31, v{vL}
v_lshlrev_b32 v20, 4, v20
v_lshl_add_u32 v20, v21, 13, v20
s_lshl_b32 s{sT[1]}, s{sJ}, 9
s_add_u32 s{sT[0]}, s{sT[1]}, {WS_EGR}
s_mov_b32 s{sT[3]}, {SPIN}
v_mov_b32 v22, 0x7ff00000
""")
for i in range(8):
    a(f"v_subrev_u32 v{10+i}, {i*16384}, v20")
    a(f"v_cmp_le_i32 vcc, {2*i}, v21\nv_cndmask_b32 v{10+i}, v22, v{10+i}, vcc")
top, done = newlabel("lb"), newlabel("lbd")
a.label(top)
for i in range(8):
    a(f"buffer_load_dwordx4 {vr(48+4*i,4)}, v{10+i}, {srd(sWS)}, s{sT[0]} offen sc1")
a("s_waitcnt vmcnt(0)\ns_mov_b64 s[32:33], 0")
for i in range(8):
    a(f"v_cmp_ne_u32 vcc, s{sTAG}, v{48+4*i+2}\nv_cmp_le_i32 s[8:9], {2*i}, v21\ns_and_b64 vcc, vcc, s[8:9]\ns_or_b64 s[32:33], s[32:33], vcc")
a(f"s_cbranch_scc0 {done}")
a(f"s_sleep 2\ns_sub_u32 s{sT[3]}, s{sT[3]}, 1\ns_cmp_lg_u32 s{sT[3]}, 0\ns_cbranch_scc1 {top}")
a.label(done)
stamp(6)
cur = 48 + 4*7
for i in range(6, -1, -1):
    cfma(48 + 4*i, vL256, cur, 48 + 4*i, 48 + 4*i)
    cur = 48 + 4*i
a("v_mov_b32 v52, v48\nv_mov_b32 v53, v49")
a("v_permlane32_swap_b32 v48, v52\nv_permlane32_swap_b32 v49, v53")
cfma(56, vL128, 52, 48, 56)
cfma(58, vPW, 56, 124, 58)
cur = 58
for t in range(16):
    cfma(vU + 2*t, vLam, cur, vU + 2*t, vU + 2*t)
    cur = vU + 2*t
for m in range(8):
    a(f"v_cvt_pk_bf16_f32 v{32+m}, v{vU+4*m}, v{vU+4*m+2}")
    a(f"v_cvt_pk_bf16_f32 v{40+m}, -v{vU+4*m+1}, -v{vU+4*m+3}")
SCR = 12288
a(f"""
v_and_b32 v20, 31, v{vL}
v_lshrrev_b32 v21, 5, v{vL}
v_lshlrev_b32 v20, 6, v20
v_lshl_add_u32 v20, v21, 5, v20
v_add_u32 v20, s{sT[8]}, v20
ds_write_b128 v20, v[32:35] offset:{SCR}
ds_write_b128 v20, v[36:39] offset:{SCR+16}
ds_write_b128 v20, v[40:43] offset:{SCR+2048}
ds_write_b128 v20, v[44:47] offset:{SCR+2064}
v_bfe_u32 v22, v{vL}, 2, 2
v_lshl_add_u32 v21, v21, 3, v22
v_lshlrev_b32 v21, 6, v21
v_and_b32 v22, 1, v{vL}
v_lshl_add_u32 v21, v22, 5, v21
v_bfe_u32 v22, v{vL}, 4, 1
v_lshl_add_u32 v21, v22, 4, v21
v_bfe_u32 v22, v{vL}, 1, 1
v_lshl_add_u32 v21, v22, 3, v21
v_add_u32 v21, s{sT[8]}, v21
s_lshl_b32 s{sT[0]}, s{sMB}, 2
s_add_u32 s{sT[0]}, s{sT[0]}, s{sG}
s_mul_i32 s{sT[0]}, s{sT[0]}, {KS*1024}
s_lshl_b32 s{sT[1]}, s{sJ}, 12
s_add_u32 s{sT[0]}, s{sT[0]}, s{sT[1]}
s_add_u32 s{sT[4]}, s{sT[0]}, {WS_HID + 86*1024}
s_waitcnt lgkmcnt(0)
""")
for f in range(4):
    for u in range(2):
        a(f"ds_read_b64_tr_b16 {vr(48+4*f+2*u,2)}, v21 offset:{SCR + f*1024 + u*256}", ("t", f))
for f in range(4):
    a.wait(lg=("t", f))
    a(f"buffer_store_dwordx4 {vr(48+4*f,4)}, v31, {srd(sWS)}, s{sT[4]} offen offset:{f*1024} sc1", "hid_st")
stamp(7)
while cq: cdma(*cq.pop(0))
flag_store(1)
stamp(8)
hid_voffs()
a(f"s_lshl_b32 s{sT[0]}, s{sG}, 3\ns_lshl_b32 s{sT[6]}, 0xff, s{sT[0]}")
flag_poll(1)
stamp(9)
a(f"""
s_mul_i32 s{sT[4]}, s{sRB}, {2*KS*1024}
s_lshl_b32 s{sT[0]}, s{sG}, 14
s_add_u32 s{sT[4]}, s{sT[4]}, s{sT[0]}
s_add_u32 s{sT[4]}, s{sT[4]}, {WS_HID + 86*1024}
""")
def aoffS(n):
    if n % 4 == 0 and n > 0: a(f"s_add_u32 s{sT[4]}, s{sT[4]}, 4096")
    return sT[4], (n % 4)*1024, 2
p2_loop(16, 8, 128, breadsS, aoffS)
stamp(10)
resid_load()
dump(sT[8])

a.label("L_final")
a(f"""
v_and_b32 v8, 7, v232
v_xor_b32 v8, v8, v233
v_lshlrev_b32 v8, 4, v8
v_lshl_add_u32 v8, v232, 8, v8
v_add_u32 v9, {2*F2SZ}, v8
v_add_u32 v10, {L_S2}, v8
v_lshlrev_b32 v11, 11, v236
v_lshl_add_u32 v11, v233, 4, v11
s_lshl_b32 s{sT[0]}, s{sRB}, 17
s_lshl_b32 s{sT[1]}, s{sNB}, 8
s_add_u32 s{sT[0]}, s{sT[0]}, s{sT[1]}
s_add_u32 s{sT[1]}, s{sT[0]}, 0x10000
s_waitcnt vmcnt(0)
""")
a(f"""
v_lshlrev_b32 v140, 16, v246
v_and_b32 v141, s{sMASK}, v246
v_lshlrev_b32 v142, 16, v247
v_and_b32 v143, s{sMASK}, v247
""")
for tb in range(2):
    x, stt, o = 240 + 2*tb, 244 + tb, 128 + 4*tb
    a(f"""
    v_lshlrev_b32 v{o}, 16, v{x}
    v_and_b32 v{o+1}, s{sMASK}, v{x}
    v_lshlrev_b32 v{o+2}, 16, v{x+1}
    v_and_b32 v{o+3}, s{sMASK}, v{x+1}
    v_and_b32 v144, s{sMASK}, v{stt}
    v_lshlrev_b32 v145, 16, v{stt}
    v_rcp_f32 v145, v145
    """)
    for i in range(4): a(f"v_sub_f32 v{148+i}, v{o+i}, v144")
    def rnd():
        a("v_cvt_pk_bf16_f32 v152, v148, v149\nv_cvt_pk_bf16_f32 v153, v150, v151")
        a(f"v_lshlrev_b32 v148, 16, v152\nv_and_b32 v149, s{sMASK}, v152\nv_lshlrev_b32 v150, 16, v153\nv_and_b32 v151, s{sMASK}, v153")
    rnd()
    for i in range(4): a(f"v_mul_f32 v{148+i}, v{148+i}, v145")
    rnd()
    for i in range(4): a(f"v_mul_f32 v{148+i}, v{148+i}, v{140+i}")
    rnd()
    for i in range(4): a(f"v_add_f32 v{o+i}, v{o+i}, v{148+i}")
a("s_waitcnt lgkmcnt(0)\ns_barrier")
stamp(11)
for tb in range(2):
    for q in range(8):
        if q < 2: base, off = 8, q*F2SZ
        elif q < 4: base, off = 9, (q-2)*F2SZ
        else: base, off = 10, (q-4)*S2SZ
        a(f"ds_read_b128 {vr(160+32*tb+4*q,4)}, v{base} offset:{off + tb*8192}", ("f", tb, q // 4))
for tb in range(2):
    o = 128 + 4*tb
    for hq in range(2):
        a.wait(lg=("f", tb, hq))
        for q in range(4*hq, 4*hq + 4):
            r = 160 + 32*tb + 4*q
            a(f"v_pk_add_f32 {vr(o,2)}, {vr(o,2)}, {vr(r,2)}\nv_pk_add_f32 {vr(o+2,2)}, {vr(o+2,2)}, {vr(r+2,2)}")
    a(f"buffer_store_dwordx4 {vr(o,4)}, v11, {srd(sOUT)}, s{sT[tb]} offen")
a(f"s_cmp_lg_u32 s2, 0xff\ns_cbranch_scc1 L_noep\ns_cmp_lg_u32 s{sW}, 0\ns_cbranch_scc1 L_noep")
a(f"v_mov_b32 v20, s{sTAG}\nv_mov_b32 v21, 0\ns_mov_b64 exec, 1")
a(f"buffer_store_dword v20, v21, {srd(sWS)}, 0 offen sc1")
a("s_mov_b64 exec, -1")
a.label("L_noep")
if STAMPS:
    a("s_waitcnt vmcnt(0)")
    stamp(12)
    a(f"s_waitcnt lgkmcnt(0)\ns_lshl_b32 s{sT[0]}, s2, 3\ns_add_u32 s{sT[0]}, s{sT[0]}, s{sW}\ns_lshl_b32 s{sT[0]}, s{sT[0]}, 7\ns_add_u32 s{sT[0]}, s{sT[0]}, {WS_STAMP}")
    a("v_mov_b32 v21, 0\ns_mov_b64 exec, 1")
    for i, r in enumerate(STAMP_REGS[:13]):
        a(f"v_mov_b32 v20, s{r}\nbuffer_store_dword v20, v21, {srd(sWS)}, s{sT[0]} offen offset:{4*i}")
a.label("L_end")
a("s_endpgm")
a.raw(f""".section .rodata,"a"
.p2align 6
.amdhsa_kernel {NAME}_kernel
  .amdhsa_next_free_vgpr 256
  .amdhsa_next_free_sgpr 102
  .amdhsa_accum_offset 256
  .amdhsa_group_segment_fixed_size 0
  .amdhsa_kernarg_size 120
  .amdhsa_user_sgpr_count 2
  .amdhsa_user_sgpr_kernarg_segment_ptr 1
  .amdhsa_system_sgpr_workgroup_id_x 1
.end_amdhsa_kernel""")
open(sys.argv[1], "w").write(a.text())
print("lines", len(a.lines), "nops", a.nnop, file=sys.stderr)
```

```python
import sys
from asmlib import Asm
NAME = "parallel_sum__ssm_conv_s5__dense_activation_silu__prompt"
OPT = dict(stamps=0, dbg=0)
for a in sys.argv[2:]:
    k, v = a.split("="); OPT[k] = int(v)
STAMPS = OPT["stamps"]

WS_EPOCH = 0
WS_FLAG  = 0x1000
WS_STAT  = 0x4000
WS_EGR   = 0x10000
WS_STAMP = 0x40000
WS_HID   = 0x100000
WS_SIZE  = WS_HID + 64*150*1024
KS = 150
L_X, L_BW, L_W1 = 0, 65536, 98304
L_MISC = 155648
L_CS   = L_MISC
L_RB   = L_MISC + 4096
L_SEG  = L_MISC + 4608
L_F2, F2SZ = 0, 22528
L_S2, S2SZ = 90112, 16384
LDS_BYTES = 163840
sX, sB, sW1, sW2, sCR, sCI, sOUT, sWS = 40, 44, 48, 52, 56, 60, 64, 68
sW, sG, sMB, sJ, sRB, sNB, sTAG, sSB = 72, 73, 74, 75, 76, 77, 78, 79
sMASK = 38
sT = [80, 81, 82, 83, 3, 4, 5, 6, 7, 39]
srd = lambda r: f"s[{r}:{r+3}]"
vr = lambda a, n: f"v[{a}:{a+n-1}]"
STAMP_REGS = [84,86,88,90,92,94,96,98,100,14,16,18,20,26,28,30]

a = Asm()
nstamp = [0]
def stamp(i):
    if STAMPS: a(f"s_memtime s[{STAMP_REGS[i]}:{STAMP_REGS[i]+1}]")

def mksrd(r, p, size):
    a(f"s_mov_b32 s{r}, s{p}\ns_mov_b32 s{r+1}, s{p+1}\ns_mov_b32 s{r+2}, {hex(size)}\ns_mov_b32 s{r+3}, 0x20000")

def cmul(d, x, y):
    a(f"v_pk_mul_f32 {vr(d,2)}, {vr(x,2)}, {vr(y,2)} op_sel:[0,0] op_sel_hi:[0,1]")
    a(f"v_pk_fma_f32 {vr(d,2)}, {vr(x,2)}, {vr(y,2)}, {vr(d,2)} op_sel:[1,1,0] op_sel_hi:[1,0,1] neg_lo:[1,0,0]")
def cfma(d, x, y, z, t):
    a(f"v_pk_fma_f32 {vr(t,2)}, {vr(x,2)}, {vr(y,2)}, {vr(z,2)} op_sel:[0,0,0] op_sel_hi:[0,1,1]")
    a(f"v_pk_fma_f32 {vr(d,2)}, {vr(x,2)}, {vr(y,2)}, {vr(t,2)} op_sel:[1,1,0] op_sel_hi:[1,0,1] neg_lo:[1,0,0]")

def dpp_sum(v):
    for m in ("row_shr:1","row_shr:2","row_shr:4","row_shr:8"):
        a(f"v_add_f32_dpp v{v}, v{v}, v{v} {m} row_mask:0xf bank_mask:0xf bound_ctrl:0")
    a(f"v_add_f32_dpp v{v}, v{v}, v{v} row_bcast:15 row_mask:0xa bank_mask:0xf")
    a(f"v_add_f32_dpp v{v}, v{v}, v{v} row_bcast:31 row_mask:0xc bank_mask:0xf")

uid = [0]
def newlabel(p):
    uid[0] += 1; return f"L_{p}_{uid[0]}"

SPIN = 0x20000
def spin_tail(top, done):
    a(f"s_sleep 2\ns_sub_u32 s{sT[3]}, s{sT[3]}, 1\ns_cmp_lg_u32 s{sT[3]}, 0\ns_cbranch_scc1 {top}")

hdr = open("cdna_kernels/%s.s.ref" % NAME).read().split("; Override")[0]
a.raw(hdr.rstrip())
a.raw(f"; @launch grid=(256,1,1) block=(512,1,1) lds={LDS_BYTES}")
a.raw('.amdgcn_target "amdgcn-amd-amdhsa--gfx950"\n.text\n.globl %s_kernel\n.p2align 8\n.type %s_kernel,@function' % (NAME, NAME))
a.label(NAME + "_kernel")
a("s_cmp_ge_u32 s2, 0x100\ns_cbranch_scc1 L_end")
a("s_load_dwordx16 s[8:23], s[0:1], 0\ns_load_dwordx8 s[24:31], s[0:1], 64\ns_load_dwordx4 s[32:35], s[0:1], 96\ns_load_dwordx2 s[36:37], s[0:1], 112")
if STAMPS:
    a("s_memrealtime s[84:85]\ns_memtime s[86:87]")
a(f"""
v_lshrrev_b32 v2, 6, v0
v_and_b32 v1, 63, v0
v_readfirstlane_b32 s{sW}, v2
s_and_b32 s{sT[0]}, s2, 7
s_lshr_b32 s{sT[1]}, s2, 3
s_and_b32 s{sMB}, s{sT[0]}, 1
s_lshl_b32 s{sMB}, s{sMB}, 3
s_and_b32 s{sNB}, s{sT[1]}, 7
s_add_u32 s{sMB}, s{sMB}, s{sNB}
s_lshr_b32 s{sJ}, s{sT[0]}, 1
s_lshl_b32 s{sJ}, s{sJ}, 2
s_lshr_b32 s{sT[2]}, s{sT[1]}, 3
s_add_u32 s{sJ}, s{sJ}, s{sT[2]}
s_lshl_b32 s{sRB}, s{sT[0]}, 2
s_add_u32 s{sRB}, s{sRB}, s{sT[2]}
s_mul_i32 s{sSB}, s{sJ}, 3
s_lshl_b32 s{sT[2]}, s{sJ}, 1
s_add_u32 s{sT[2]}, s{sT[2]}, 11
s_min_u32 s{sSB}, s{sSB}, s{sT[2]}
s_mov_b32 s{sMASK}, 0xffff0000
s_and_b32 s{sG}, s{sW}, 3
""")
vL = 1
vH, vI, vF, vTmp, vTmp2, vTmp3 = 20, 21, 22, 23, 24, 25
vXA, vST, vSTA = 2, 28, 30
vROW = 128
a(f"""
v_lshrrev_b32 v{vH}, 5, v{vL}
v_and_b32 v{vI}, 31, v{vL}
v_bfe_u32 v{vF}, v{vL}, 1, 3
v_lshlrev_b32 v31, 4, v{vL}
""")
a(f"""
s_lshl_b32 s{sT[0]}, s{sG}, 1
v_xor_b32 v{vTmp}, v{vH}, v{vF}
v_xor_b32 v{vTmp}, s{sT[0]}, v{vTmp}
v_lshlrev_b32 v{vTmp}, 4, v{vTmp}
v_lshl_add_u32 v{vTmp}, v{vI}, 7, v{vTmp}
s_lshl_b32 s{sT[0]}, s{sG}, 12
v_add_u32 v{vXA}, s{sT[0]}, v{vTmp}
v_xor_b32 v{vXA+1}, 32, v{vXA}
v_xor_b32 v{vXA+2}, 64, v{vXA}
v_xor_b32 v{vXA+3}, 0x60, v{vXA}
""")
vTI = 26
a(f"""
v_bfe_u32 v{vTmp2}, v{vL}, 2, 1
v_bfe_u32 v{vTmp3}, v{vL}, 3, 2
v_and_b32 v{vTI}, 3, v{vL}
v_lshl_add_u32 v{vTI}, v{vTmp2}, 4, v{vTI}
v_lshl_add_u32 v{vTI}, v{vTmp3}, 2, v{vTI}
v_lshlrev_b32 v{vSTA}, 3, v{vTI}
""")
a(f"""
v_and_b32 v{vTmp2}, 7, v{vL}
v_lshrrev_b32 v{vTmp3}, 4, v{vL}
v_xor_b32 v27, v{vTmp2}, v{vTmp3}
v_lshlrev_b32 v27, 4, v27
""")
a("s_waitcnt lgkmcnt(0)")
a(f"s_load_dword s{sTAG}, s[36:37], {WS_EPOCH}")
mksrd(sX, 8, 0x200000)
a(f"""
s_lshl_b32 s{sT[0]}, s{sMB}, 7
s_lshl_b32 s{sT[1]}, s{sJ}, 3
s_add_u32 s{sT[0]}, s{sT[0]}, s{sT[1]}
s_add_u32 s{sT[4]}, s{sT[0]}, s{sW}
s_lshl_b32 s{sT[0]}, s{sT[4]}, 10
""")
a(f"buffer_load_dwordx4 {vr(vROW,4)}, v31, {srd(sX)}, s{sT[0]} offen", "row")
a(f"s_cmp_ge_u32 s{sG}, 2\ns_cselect_b32 s{sB}, s16, s14\ns_cselect_b32 s{sB+1}, s17, s15\ns_mov_b32 s{sB+2}, 0x80000\ns_mov_b32 s{sB+3}, 0x20000")
mksrd(sW1, 28, 512*1376*2)
mksrd(sW2, 30, 512*1376*2)
mksrd(sCR, 18, 0x80000)
mksrd(sCI, 20, 0x80000)
mksrd(sOUT, 32, 0x400000)
mksrd(sWS, 36, WS_SIZE)
a(f"s_cmp_ge_u32 s{sW}, 4\ns_cbranch_scc1 L_S")
st0 = a.fork()

def stats():
    e = 132
    for i in range(4):
        a(f"v_lshlrev_b32 v{e+2*i}, 16, v{vROW+i}\nv_and_b32 v{e+2*i+1}, s{sMASK}, v{vROW+i}")
    s = 140
    a(f"v_add_f32 v{s}, v{e}, v{e+1}\nv_add_f32 v{s+1}, v{e+2}, v{e+3}\nv_add_f32 v{s+2}, v{e+4}, v{e+5}\nv_add_f32 v{s+3}, v{e+6}, v{e+7}")
    a(f"v_add_f32 v{s}, v{s}, v{s+1}\nv_add_f32 v{s+2}, v{s+2}, v{s+3}\nv_add_f32 v{s}, v{s}, v{s+2}")
    dpp_sum(s)
    a(f"v_readlane_b32 s{sT[0]}, v{s}, 63")
    a(f"v_mov_b32 v{s+1}, 0x3b000000\nv_mul_f32 v{s+1}, s{sT[0]}, v{s+1}")
    for i in range(8): a(f"v_sub_f32 v{e+i}, v{e+i}, v{s+1}")
    a(f"v_mul_f32 v{s}, v{e}, v{e}\nv_mul_f32 v{s+2}, v{e+1}, v{e+1}")
    for i in range(2, 8): a(f"v_fmac_f32 v{s+(i&1)*2}, v{e+i}, v{e+i}")
    a(f"v_add_f32 v{s}, v{s}, v{s+2}")
    dpp_sum(s)
    a(f"""
    v_mul_f32 v{s}, 0x3b000000, v{s}
    v_cvt_pk_bf16_f32 v{s+2}, v{s}, v{s+1}
    v_lshlrev_b32 v{s}, 16, v{s+2}
    v_add_f32 v{s}, 0x3727c5ac, v{s}
    v_cvt_pk_bf16_f32 v{s}, v{s}, v{s}
    v_lshlrev_b32 v{s}, 16, v{s}
    v_sqrt_f32 v{s}, v{s}
    v_cvt_pk_bf16_f32 v{s+4}, v{s}, v{s+1}
    s_waitcnt lgkmcnt(0)
    s_add_u32 s{sTAG}, s{sTAG}, 0x9e3779b9
    v_mov_b32 v{s+5}, s{sTAG}
    s_lshl_b32 s{sT[0]}, s{sT[4]}, 3
    s_add_u32 s{sT[0]}, s{sT[0]}, {WS_STAT}
    v_mov_b32 v{s+6}, 0
    s_mov_b32 exec_lo, 0
    s_mov_b32 exec_hi, 0x80000000
    """)
    a(f"buffer_store_dwordx2 {vr(s+4,2)}, v{s+6}, {srd(sWS)}, s{sT[0]} offen sc1", "stat_st")
    a("s_mov_b64 exec, -1")

def stat_load(tag):
    a(f"buffer_load_dwordx2 {vr(vST,2)}, v{vSTA}, {srd(sWS)}, s{sT[5]} offen sc1", tag)
def stat_off():
    a(f"s_lshl_b32 s{sT[5]}, s{sMB}, 10\ns_lshl_b32 s{sT[0]}, s{sG}, 8\ns_add_u32 s{sT[5]}, s{sT[5]}, s{sT[0]}\ns_add_u32 s{sT[5]}, s{sT[5]}, {WS_STAT}")
def stat_check():
    top, done = newlabel("stp"), newlabel("std")
    a(f"s_mov_b32 s{sT[3]}, {SPIN}")
    a.wait(vm="stat_ld")
    a.label(top)
    a(f"v_cmp_ne_u32 vcc, s{sTAG}, v{vST+1}\ns_cmp_eq_u64 vcc, 0\ns_cbranch_scc1 {done}")
    st = a.fork()
    a("s_sleep 2")
    stat_load(None)
    a(f"s_waitcnt vmcnt(0)\ns_sub_u32 s{sT[3]}, s{sT[3]}, 1\ns_cmp_lg_u32 s{sT[3]}, 0\ns_cbranch_scc1 {top}")
    a.label(done)
    a.restore(st)

def colsum_ops(frags, vlo, vhi, first):
    ops = []
    for n, (r, b) in enumerate(frags):
        t0, t1 = 20 + 2*(n & 1), 21 + 2*(n & 1)
        ops.append(f"v_lshlrev_b32 v{t0}, 16, v{r}")
        ops.append(f"v_and_b32 v{t1}, s{sMASK}, v{r}")
        ops.append(f"v_add_f32 v{vlo+b}, v{vlo+b}, v{t0}")
        ops.append(f"v_add_f32 v{vhi+b}, v{vhi+b}, v{t1}")
    return ops

def p1_loop(nb, reads, mfma, dma, wset, vlo, vhi):
    a.wait(vm=("c", 0)); a("s_barrier")
    reads(0)
    pend_dma = []; pend_cs = []
    for n in range(32):
        c, s = n >> 2, n & 3
        if s == 0:
            if c + 3 < 8: pend_dma = dma(c + 3)
            pend_cs = colsum_ops([(wset(n) + 4*b + i, b) for b in range(nb) for i in range(4)], vlo, vhi, c == 0)
        if n + 1 < 32:
            if s == 3:
                a.wait(vm=("c", c + 1), lg=("r", n)); a("s_barrier")
                reads(n + 1)
            else:
                reads(n + 1); a.wait(lg=("r", n))
        else:
            a.wait(lg=("r", n))
        if n == 20: stat_load("stat_ld")
        ncs = (len(pend_cs) + (2 - s)) // (3 - s) if s < 3 else 0
        per = (ncs + nb - 1) // nb
        nd = (len(pend_dma) + (2 - s)) // (3 - s) if s < 3 else 0
        for b in range(nb):
            mfma(n, b)
            if nd > 0 and pend_dma:
                pend_dma.pop(0)(); nd -= 1
            for _ in range(min(per, ncs)):
                a(pend_cs.pop(0)); ncs -= 1
        assert s < 2 or (not pend_cs and not pend_dma), (n, len(pend_cs), len(pend_dma))

def cs_exchange(nb, stream, vlo, vhi, dst):
    for b in range(nb):
        a(f"v_add_f32 v{vlo+b}, v{vlo+b}, v{vhi+b}")
    for b in range(nb):
        a(f"v_mov_b32 v{vhi+b}, v{vlo+b}")
    for b in range(nb):
        a(f"v_permlane32_swap_b32 v{vlo+b}, v{vhi+b}")
    for b in range(nb):
        a(f"v_add_f32 v{20+b}, v{vlo+b}, v{vhi+b}")
    a(f"""
    v_and_b32 v24, 31, v{vL}
    v_lshlrev_b32 v24, 4, v24
    v_add_u32 v24, {L_CS + stream*2048}, v24
    s_lshl_b32 s{sT[0]}, s{sG}, 9
    v_add_u32 v25, s{sT[0]}, v24
    ds_write_b128 v25, v[20:23]
    s_waitcnt lgkmcnt(0)
    s_barrier
    """)
    for g in range(4): a(f"ds_read_b128 {vr(32+4*g,4)}, v24 offset:{512*g}", "cs")

def cs_finish(nb, dst):
    a.wait(lg="cs")
    for b in range(nb):
        a(f"v_add_f32 v{32+b}, v{32+b}, v{36+b}\nv_add_f32 v{40+b}, v{40+b}, v{44+b}")
    for b in range(nb):
        a(f"v_add_f32 v{32+b}, v{32+b}, v{40+b}")
    for b in range(nb):
        a(f"v_and_b32 v{36+b}, s{sMASK}, v{32+b}\nv_sub_f32 v{32+b}, v{32+b}, v{36+b}\nv_cvt_pk_bf16_f32 v{dst+4*b}, v{32+b}, v{36+b}")
        a(f"v_mov_b32 v{dst+4*b+1}, 0\nv_mov_b32 v{dst+4*b+2}, 0\nv_mov_b32 v{dst+4*b+3}, 0")

def xaug(dst):
    a(f"""
    v_and_b32 v{dst}, s{sMASK}, v{vST}
    v_cvt_pk_bf16_f32 v{dst}, -v{dst}, -v{dst}
    v_cmp_gt_u32 vcc, 32, v{vL}
    v_mov_b32 v{dst+1}, 0
    v_mov_b32 v{dst+2}, 0
    v_mov_b32 v{dst+3}, 0
    v_cndmask_b32 v{dst}, 0, v{dst}, vcc
    """)

def flag_store(stream):
    a(f"""
    s_lshl_b32 s{sT[0]}, s{sMB}, 1
    s_lshr_b32 s{sT[1]}, s{sG}, 1
    s_add_u32 s{sT[0]}, s{sT[0]}, s{sT[1]}
    s_lshl_b32 s{sT[0]}, s{sT[0]}, 5
    s_lshl_b32 s{sT[1]}, s{sJ}, 1
    s_add_u32 s{sT[0]}, s{sT[0]}, s{sT[1]}
    s_and_b32 s{sT[1]}, s{sG}, 1
    s_add_u32 s{sT[0]}, s{sT[0]}, s{sT[1]}
    s_lshl_b32 s{sT[0]}, s{sT[0]}, 2
    s_add_u32 s{sT[0]}, s{sT[0]}, {WS_FLAG + stream*4096}
    v_mov_b32 v20, s{sTAG}
    v_mov_b32 v21, 0
    """)
    a.wait(vm="hid_st")
    a("s_mov_b64 exec, 1")
    a(f"buffer_store_dword v20, v21, {srd(sWS)}, s{sT[0]} offen sc1", "flag_st")
    a("s_mov_b64 exec, -1")

def flag_poll(stream):
    top, done = newlabel("fp"), newlabel("fd")
    a(f"""
    s_lshl_b32 s{sT[0]}, s{sRB}, 7
    s_add_u32 s{sT[0]}, s{sT[0]}, {WS_FLAG + stream*4096}
    v_and_b32 v20, 31, v{vL}
    v_lshlrev_b32 v20, 2, v20
    s_mov_b32 s{sT[3]}, {SPIN}
    """)
    a.label(top)
    a(f"buffer_load_dword v21, v20, {srd(sWS)}, s{sT[0]} offen sc1")
    a(f"s_waitcnt vmcnt(0)\nv_cmp_ne_u32 vcc, s{sTAG}, v21\ns_and_b32 s{sT[1]}, vcc_lo, s{sT[6]}\ns_cbranch_scc0 {done}")
    a(f"s_sleep 2\ns_sub_u32 s{sT[3]}, s{sT[3]}, 1\ns_cmp_lg_u32 s{sT[3]}, 0\ns_cbranch_scc1 {top}")
    a.label(done)

ACC2, ABUF, DA, BT = 64, 16, 6, 216
def p2_loop(nsteps, held, heldreg, breads, aoff):
    def aload(n):
        sg, imm, va = aoff(n)
        r = ABUF + 8*(n % DA)
        a(f"buffer_load_dwordx4 {vr(r,4)}, v{va}, {srd(sWS)}, s{sg} offen offset:{imm} sc1", ("a", n))
        a(f"buffer_load_dwordx4 {vr(r+4,4)}, v{va+1}, {srd(sWS)}, s{sg} offen offset:{imm} sc1", ("a", n))
    for n in range(min(DA, nsteps)): aload(n)
    for n in range(nsteps):
        a.wait(vm=("a", n))
        if held <= n + 1 < nsteps: breads(n + 1, BT + 8*((n + 1) & 1))
        if n >= held: a.wait(lg=("b", n))
        w = heldreg + 8*n if n < held else BT + 8*(n & 1)
        r = ABUF + 8*(n % DA)
        for tb in range(2):
            for db in range(2):
                acc = ACC2 + 16*(2*db + tb)
                c = "0" if n == 0 else vr(acc, 16)
                a(f"v_mfma_f32_32x32x16_bf16 {vr(acc,16)}, {vr(w+4*db,4)}, {vr(r+4*tb,4)}, {c}")
        if n + DA < nsteps: aload(n + DA)

def hid_voffs():
    a(f"v_lshlrev_b32 v2, 4, v{vL}\nv_add_u32 v3, {KS*1024}, v2")

def resid_load():
    a(f"""
    v_lshrrev_b32 v232, 4, v0
    v_and_b32 v233, 15, v0
    v_bfe_u32 v234, v232, 2, 1
    v_lshrrev_b32 v235, 3, v232
    v_and_b32 v236, 3, v232
    v_lshl_add_u32 v236, v234, 4, v236
    v_lshl_add_u32 v236, v235, 2, v236
    v_lshlrev_b32 v234, 10, v236
    v_lshl_add_u32 v234, v233, 3, v234
    v_lshlrev_b32 v235, 3, v236
    s_lshl_b32 s{sT[0]}, s{sRB}, 16
    s_lshl_b32 s{sT[1]}, s{sNB}, 7
    s_add_u32 s{sT[0]}, s{sT[0]}, s{sT[1]}
    s_add_u32 s{sT[2]}, s{sT[0]}, 0x8000
    """)
    a(f"buffer_load_dwordx2 v[240:241], v234, {srd(sX)}, s{sT[0]} offen", "res")
    a(f"buffer_load_dwordx2 v[242:243], v234, {srd(sX)}, s{sT[2]} offen", "res")
    a(f"s_lshl_b32 s{sT[0]}, s{sRB}, 9\ns_add_u32 s{sT[0]}, s{sT[0]}, {WS_STAT}")
    a(f"buffer_load_dword v244, v235, {srd(sWS)}, s{sT[0]} offen sc1", "res")
    a(f"buffer_load_dword v245, v235, {srd(sWS)}, s{sT[0]} offen offset:256 sc1", "res")
    a(f"v_lshlrev_b32 v237, 3, v233\nv_add_u32 v237, s{sT[1]}, v237")
    a(f"global_load_dwordx2 v[246:247], v237, s[24:25]", "res")

def dump(base_expr_sgpr):
    a(f"""
    v_and_b32 v4, 31, v{vL}
    v_lshrrev_b32 v5, 5, v{vL}
    v_and_b32 v6, 7, v{vL}
    v_xor_b32 v5, v5, v6
    v_lshlrev_b32 v5, 4, v5
    v_lshl_add_u32 v4, v4, 8, v5
    v_add_u32 v4, s{base_expr_sgpr}, v4
    v_xor_b32 v5, 32, v4
    v_xor_b32 v6, 64, v4
    v_xor_b32 v7, 0x60, v4
    """)
    for db in range(2):
        for tb in range(2):
            for g in range(4):
                a(f"ds_write_b128 v{4+g}, {vr(ACC2+16*(2*db+tb)+4*g,4)} offset:{tb*8192+db*128}")

vWA, vDX = 6, 10
a(f"""
v_bfe_u32 v{vTmp}, v{vL}, 3, 2
v_lshl_add_u32 v{vTmp}, v{vH}, 4, v{vTmp}
v_lshl_add_u32 v{vDX}, v{vTmp}, 10, v27
v_add_u32 v{vDX+2}, 0x1800, v{vDX}
v_xor_b32 v{vDX+1}, 64, v{vDX}
v_add_u32 v{vDX+1}, 0xc00, v{vDX+1}
v_add_u32 v{vDX+3}, 0x1800, v{vDX+1}
s_lshl_b32 s{sT[7]}, s{sMB}, 17
s_lshl_b32 s{sT[0]}, s{sG}, 15
s_add_u32 s{sT[7]}, s{sT[7]}, s{sT[0]}
s_lshl_b32 s{sT[8]}, s{sG}, 12
""")
def dmaF(c):
    def one(i):
        def f():
            if i == 0: a(f"s_add_u32 m0, s{sT[8]}, {L_X + (c&3)*16384}\ns_add_u32 s{sT[9]}, s{sT[7]}, {c*128}")
            a(f"buffer_load_dwordx4 v{vDX+i}, {srd(sX)}, s{sT[9]} offen offset:{1024*i} lds", ("c", c))
        return f
    return [one(i) for i in range(4)]
for f in dmaF(0): f()
a("s_barrier")
for f in dmaF(1): f()
a(f"""
v_bfe_u32 v{vTmp}, v{vL}, 2, 2
v_lshl_add_u32 v{vTmp}, v{vH}, 3, v{vTmp}
v_lshlrev_b32 v{vTmp}, 6, v{vTmp}
v_bfe_u32 v{vTmp2}, v{vL}, 4, 1
v_lshl_add_u32 v{vTmp}, v{vTmp2}, 5, v{vTmp}
v_and_b32 v{vTmp2}, 1, v{vL}
v_lshl_add_u32 v{vTmp}, v{vTmp2}, 4, v{vTmp}
v_bfe_u32 v{vTmp2}, v{vL}, 1, 1
v_lshl_add_u32 v{vTmp}, v{vTmp2}, 3, v{vTmp}
""")
for s in range(4):
    a(f"s_xor_b32 s{sT[0]}, s{sG}, {s}\ns_mul_i32 s{sT[0]}, s{sT[0]}, 3072\ns_add_u32 s{sT[0]}, s{sT[0]}, {L_W1}\nv_add_u32 v{vWA+s}, s{sT[0]}, v{vTmp}")
for r in range(14, 20): a(f"v_mov_b32 v{r}, 0")
stat_off()
a.wait(vm="row")
stats()
a("s_barrier")
for f in dmaF(2): f()
stamp(2)
ACC1 = 80
wsetF = lambda n: (40, 52, 64, 52)[n & 3]
def readsF(n):
    c, s = n >> 2, n & 3
    a(f"ds_read_b128 {vr(32+4*(n&1),4)}, v{vXA+s} offset:{(c&3)*16384}", ("r", n))
    for b in range(3):
        for u in range(2):
            a(f"ds_read_b64_tr_b16 {vr(wsetF(n)+4*b+2*u,2)}, v{vWA+s} offset:{(c&3)*12288+b*1024+u*256}", ("r", n))
def mfmaF(n, b):
    acc = vr(ACC1+16*b, 16)
    a(f"v_mfma_f32_32x32x16_bf16 {acc}, {vr(wsetF(n)+4*b,4)}, {vr(32+4*(n&1),4)}, {'0' if n == 0 else acc}")
p1_loop(3, readsF, mfmaF, dmaF, wsetF, 14, 17)
stamp(3)
cs_exchange(3, 0, 14, 17, 52)
a(f"""
v_lshrrev_b32 v4, 3, v{vL}
v_and_b32 v5, 7, v{vL}
v_bfe_u32 v6, v{vL}, 4, 1
v_lshlrev_b32 v6, 2, v6
v_xor_b32 v5, v5, v6
v_lshlrev_b32 v5, 4, v5
v_lshl_add_u32 v4, v4, 10, v5
s_mul_i32 s{sT[7]}, s{sG}, {352*1024}
s_lshl_b32 s{sT[0]}, s{sNB}, 7
s_add_u32 s{sT[7]}, s{sT[7]}, s{sT[0]}
s_mul_i32 s{sT[8]}, s{sG}, {F2SZ}
""")
def w2dma(i):
    a(f"s_add_u32 m0, s{sT[8]}, {L_F2 + (i % 22)*1024}\ns_add_u32 s{sT[9]}, s{sT[7]}, {i*8192}")
    a(f"buffer_load_dwordx4 v4, {srd(sW2)}, s{sT[9]} offen lds", ("w", i // 22))
wq = list(range(22))
for _ in range(2): w2dma(wq.pop(0))
stat_check()
xaug(48)
cs_finish(3, 52)
for b in range(3):
    acc = vr(ACC1+16*b, 16)
    a(f"v_mfma_f32_32x32x16_bf16 {acc}, {vr(52+4*b,4)}, v[48:51], {acc}")
a(f"""
v_lshlrev_b32 v34, 16, v{vST}
v_rcp_f32 v32, v34
v_mul_f32 v32, 0xbfb8aa3b, v32
s_lshl_b32 s{sT[0]}, s{sMB}, 2
s_add_u32 s{sT[0]}, s{sT[0]}, s{sG}
s_mul_i32 s{sT[0]}, s{sT[0]}, {KS*1024}
s_lshl_b32 s{sT[1]}, s{sSB}, 11
s_add_u32 s{sT[0]}, s{sT[0]}, s{sT[1]}
s_add_u32 s{sT[4]}, s{sT[0]}, {WS_HID}
s_add_u32 s{sT[5]}, s{sT[4]}, 4096
s_cmp_ge_u32 s{sJ}, 11
s_cselect_b32 s{sT[0]}, 0x7ff00000, 0
v_add_u32 v5, s{sT[0]}, v31
""")
for b in range(3):
    A = ACC1 + 16*b
    for f in range(2):
        z = 36 + 8*f * 1
        o = 56 + 4*((2*b+f) & 3)
        for m in range(4):
            a(f"v_pk_mul_f32 {vr(z+2*m,2)}, {vr(A+8*f+2*m,2)}, v[32:33] op_sel_hi:[1,0]")
        for m in range(8): a(f"v_exp_f32 v{z+m}, v{z+m}")
        for m in range(4):
            a(f"v_pk_fma_f32 {vr(z+2*m,2)}, {vr(z+2*m,2)}, v[34:35], v[34:35] op_sel_hi:[1,0,0]")
        for m in range(8): a(f"v_rcp_f32 v{z+m}, v{z+m}")
        for m in range(4):
            a(f"v_pk_mul_f32 {vr(z+2*m,2)}, {vr(z+2*m,2)}, {vr(A+8*f+2*m,2)}")
        for m in range(4):
            a(f"v_cvt_pk_bf16_f32 v{o+m}, v{z+2*m}, v{z+2*m+1}")
        sg, imm = (sT[4], b*2048 + f*1024) if b < 2 else (sT[5], f*1024)
        a(f"buffer_store_dwordx4 {vr(o,4)}, v{31 if b < 2 else 5}, {srd(sWS)}, s{sg} offen offset:{imm} sc1", "hid_st")
        for _ in range(2):
            if wq: w2dma(wq.pop(0))
    if b == 0: a("s_barrier")
stamp(4)
while wq: w2dma(wq.pop(0))
flag_store(0)
stamp(5)
a(f"""
v_lshrrev_b32 v7, 5, v{vL}
v_bfe_u32 v8, v{vL}, 2, 2
v_lshl_add_u32 v7, v7, 3, v8
v_lshlrev_b32 v7, 7, v7
v_bfe_u32 v8, v{vL}, 3, 1
v_lshl_add_u32 v7, v8, 6, v7
v_bfe_u32 v8, v{vL}, 4, 1
v_lshl_add_u32 v7, v8, 5, v7
v_and_b32 v8, 3, v{vL}
v_lshl_add_u32 v7, v8, 3, v7
v_add_u32 v5, s{sT[8]}, v7
v_xor_b32 v6, 64, v5
""")
def breadsF(n, dst):
    for db in range(2):
        for u in range(2):
            a(f"ds_read_b64_tr_b16 {vr(dst+4*db+2*u,2)}, v{5+db} offset:{L_F2 + (n % 11)*2048 + u*512}", ("b", n))
a.wait(vm=("w", 0))
for n in range(11):
    breadsF(n, 128 + 8*n)
a("s_waitcnt lgkmcnt(0)")
stamp(6)
for i in range(22, 44): w2dma(i)
hid_voffs()
a(f"""
s_mov_b32 s{sT[6]}, 0x000000ff
s_cmp_eq_u32 s{sG}, 1
s_cselect_b32 s{sT[6]}, 0x0000ffc0, s{sT[6]}
s_cmp_eq_u32 s{sG}, 2
s_cselect_b32 s{sT[6]}, 0x003fc000, s{sT[6]}
s_cmp_eq_u32 s{sG}, 3
s_cselect_b32 s{sT[6]}, 0xffc00000, s{sT[6]}
""")
flag_poll(0)
stamp(7)
a(f"""
s_mul_i32 s{sT[4]}, s{sRB}, {2*KS*1024}
s_mul_i32 s{sT[0]}, s{sG}, {22*1024}
s_add_u32 s{sT[4]}, s{sT[4]}, s{sT[0]}
s_add_u32 s{sT[4]}, s{sT[4]}, {WS_HID}
s_cmp_eq_u32 s{sG}, 3
s_cselect_b32 s{sT[0]}, 0x7ff00000, 0
v_add_u32 v8, s{sT[0]}, v2
v_add_u32 v9, s{sT[0]}, v3
""")
def aoffF(n):
    if n % 4 == 0 and n > 0: a(f"s_add_u32 s{sT[4]}, s{sT[4]}, 4096")
    return sT[4], (n % 4)*1024, (8 if n >= 20 else 2)
p2_loop(22, 11, 128, breadsF, aoffF)
stamp(8)
resid_load()
dump(sT[8])
a("s_branch L_final")
stF = a.fork()

a.restore(st0)
a.raw(".p2align 6")
a.label("L_S")
vBA, vDB, vDW = 6, 10, 12
a(f"""
v_lshrrev_b32 v{vTmp}, 3, v{vL}
v_lshl_add_u32 v{vDB}, v{vTmp}, 10, v27
v_xor_b32 v{vDB+1}, 64, v{vDB}
v_add_u32 v{vDB+1}, 0x1c00, v{vDB+1}
v_lshrrev_b32 v{vTmp}, 2, v{vL}
v_mul_u32_u24 v{vTmp}, 2752, v{vTmp}
v_and_b32 v{vTmp2}, 3, v{vL}
v_lshl_add_u32 v{vDW}, v{vTmp2}, 4, v{vTmp}
s_lshl_b32 s{sT[7]}, s{sJ}, 15
s_and_b32 s{sT[0]}, s{sG}, 1
s_lshl_b32 s{sT[0]}, s{sT[0]}, 14
s_add_u32 s{sT[7]}, s{sT[7]}, s{sT[0]}
s_mul_i32 s{sT[6]}, s{sG}, {16*2752}
s_lshl_b32 s{sT[0]}, s{sSB}, 6
s_add_u32 s{sT[6]}, s{sT[6]}, s{sT[0]}
s_lshl_b32 s{sT[8]}, s{sG}, 11
s_mul_i32 s{sT[2]}, s{sG}, 3072
""")
def dmaS(c):
    def bw(i):
        def f():
            a(f"s_add_u32 m0, s{sT[8]}, {L_BW + (c&3)*8192}\ns_add_u32 s{sT[9]}, s{sT[7]}, {c*128}")
            a(f"buffer_load_dwordx4 v{vDB+i}, {srd(sB)}, s{sT[9]} offen offset:{1024*i} lds", ("c", c))
        return f
    def w1(b):
        def f():
            a(f"s_add_u32 m0, s{sT[2]}, {L_W1 + (c&3)*12288 + 960*b}\ns_add_u32 s{sT[9]}, s{sT[6]}, {c*64*2752}")
            a(f"buffer_load_dwordx4 v{vDW}, {srd(sW1)}, s{sT[9]} offen offset:{64*b} lds", ("c", c))
        return f
    return [w1(0), w1(1), w1(2), bw(0), bw(1)]
for f in dmaS(0): f()
a(f"s_lshl_b32 s{sT[0]}, s{sJ}, 6\nv_lshl_add_u32 v{vTmp}, v{vI}, 1, s{sT[0]}")
a(f"global_load_ushort v150, v{vTmp}, s[10:11]", "par")
a(f"global_load_ushort v151, v{vTmp}, s[12:13]", "par")
a(f"global_load_ushort v152, v{vTmp}, s[22:23]", "par")
a("s_barrier")
for f in dmaS(1): f()
a(f"s_lshl_b32 s{sT[0]}, s{sG}, 12\ns_sub_u32 s{sT[0]}, {L_BW}, s{sT[0]}")
for s in range(4): a(f"v_add_u32 v{vBA+s}, s{sT[0]}, v{vXA+s}")
for r in range(14, 20): a(f"v_mov_b32 v{r}, 0")
stat_off()
a.wait(vm="row")
stats()
a("s_barrier")
for f in dmaS(2): f()
vLam, vK, vL16, vL128, vL256, vPW = 112, 114, 116, 118, 120, 122
a.wait(vm="par")
a(f"""
v_lshlrev_b32 v150, 16, v150
v_lshlrev_b32 v151, 16, v151
v_lshlrev_b32 v152, 16, v152
v_mul_f32 v152, 0x3fb8aa3b, v152
v_exp_f32 v152, v152
v_cvt_pk_bf16_f32 v152, v152, v152
v_lshlrev_b32 v152, 16, v152
v_mul_f32 v153, v152, v150
v_mul_f32 v154, v152, v151
v_mul_f32 v153, 0x3fb8aa3b, v153
v_exp_f32 v153, v153
v_mul_f32 v154, 0.15915494, v154
v_rndne_f32 v155, v154
v_sub_f32 v154, v154, v155
v_cos_f32 v155, v154
v_sin_f32 v156, v154
v_mul_f32 v{vLam}, v153, v155
v_mul_f32 v{vLam+1}, v153, v156
v_add_f32 v153, -1.0, v{vLam}
v_mul_f32 v154, v150, v150
v_fmac_f32 v154, v151, v151
v_rcp_f32 v154, v154
v_mul_f32 v155, v153, v150
v_fmac_f32 v155, v{vLam+1}, v151
v_mul_f32 v156, v{vLam+1}, v150
v_fma_f32 v156, -v153, v151, v156
v_add_f32 v154, v154, v154
v_mul_f32 v{vK}, v155, v154
v_mul_f32 v{vK+1}, v156, v154
""")
cmul(150, vLam, vLam); cmul(152, 150, 150); cmul(150, 152, 152); cmul(vL16, 150, 150)
cmul(150, vL16, vL16)
cmul(152, 150, 150)
cmul(vL128, 152, 152); cmul(vL256, vL128, vL128)
a(f"""
v_cmp_gt_u32 vcc, 32, v{vL}
v_cndmask_b32 v154, v{vL16}, 1.0, vcc
v_cndmask_b32 v155, v{vL16+1}, 0, vcc
s_bitcmp1_b32 s{sG}, 0
s_cselect_b64 vcc, -1, 0
v_cndmask_b32 v150, 1.0, v150, vcc
v_cndmask_b32 v151, 0, v151, vcc
s_bitcmp1_b32 s{sG}, 1
s_cselect_b64 vcc, -1, 0
v_cndmask_b32 v152, 1.0, v152, vcc
v_cndmask_b32 v153, 0, v153, vcc
""")
cmul(156, 154, 150); cmul(vPW, 156, 152)
stamp(2)
wsetS = lambda n: (40, 52, 64, 52)[n & 3]
def readsS(n):
    c, s = n >> 2, n & 3
    a(f"ds_read_b128 {vr(32+4*(n&1),4)}, v{vXA+s} offset:{(c&3)*16384}", ("r", n))
    for b in range(2):
        a(f"ds_read_b128 {vr(wsetS(n)+4*b,4)}, v{vBA+s} offset:{(c&3)*8192+b*4096}", ("r", n))
def mfmaS(n, b):
    acc = vr(ACC1+16*b, 16)
    a(f"v_mfma_f32_32x32x16_bf16 {acc}, {vr(32+4*(n&1),4)}, {vr(wsetS(n)+4*b,4)}, {'0' if n == 0 else acc}")
p1_loop(2, readsS, mfmaS, dmaS, wsetS, 14, 17)
stamp(3)
cs_exchange(2, 1, 14, 17, 52)
a(f"""
v_lshrrev_b32 v4, 3, v{vL}
v_lshl_add_u32 v4, v4, 10, v27
v_xor_b32 v5, 64, v4
s_lshl_b32 s{sT[7]}, s{sNB}, 16
s_lshl_b32 s{sT[0]}, s{sG}, 8
s_add_u32 s{sT[7]}, s{sT[7]}, s{sT[0]}
s_lshl_b32 s{sT[8]}, s{sG}, 14
s_add_u32 s{sT[8]}, s{sT[8]}, {L_S2}
""")
def cdma(kh, part, i):
    a(f"s_add_u32 m0, s{sT[8]}, {part*8192 + i*1024}\ns_add_u32 s{sT[9]}, s{sT[7]}, {i*8192 + kh*128}")
    a(f"buffer_load_dwordx4 v{4+(i&1)}, {srd(sCI if part else sCR)}, s{sT[9]} offen lds", ("w", kh))
cq = [(0, p, i) for p in range(2) for i in range(8)]
for _ in range(2): cdma(*cq.pop(0))
stat_check()
xaug(48)
a(f"""
v_lshlrev_b32 v60, 16, v{vST}
v_rcp_f32 v60, v60
s_lshl_b32 s{sT[0]}, s{sG}, 7
s_add_u32 s{sT[0]}, s{sT[0]}, {L_RB}
v_lshl_add_u32 v61, v{vTI}, 2, s{sT[0]}
v_lshrrev_b32 v62, 5, v{vL}
v_lshl_add_u32 v62, v62, 6, s{sT[0]}
""")
a("ds_write_b32 v61, v60", "rw")
cs_finish(2, 52)
for b in range(2):
    acc = vr(ACC1+16*b, 16)
    a(f"v_mfma_f32_32x32x16_bf16 {acc}, v[48:51], {vr(52+4*b,4)}, {acc}")
a.wait(lg="rw")
vR, vU = 32, 192
for q in range(4): a(f"ds_read_b128 {vr(vR+4*q,4)}, v62 offset:{16*q}", "rr")
for _ in range(2): cdma(*cq.pop(0))
for t in range(16):
    e, o = t & ~1, t & 1
    a(f"v_pk_mul_f32 {vr(vU+2*t,2)}, {vr(vK,2)}, {vr(ACC1+e,2)} op_sel:[0,{o}] op_sel_hi:[1,{o}]")
    a(f"v_pk_fma_f32 {vr(vU+2*t,2)}, {vr(vK,2)}, {vr(ACC1+16+e,2)}, {vr(vU+2*t,2)} op_sel:[1,{o},0] op_sel_hi:[0,{o},1] neg_lo:[1,0,0]")
a.wait(lg="rr")
for t in range(16):
    e, o = t & ~1, t & 1
    a(f"v_pk_mul_f32 {vr(vU+2*t,2)}, {vr(vU+2*t,2)}, {vr(vR+e,2)} op_sel:[0,{o}] op_sel_hi:[1,{o}]")
for _ in range(2): cdma(*cq.pop(0))
cur = vU
for t in range(1, 16):
    d = 48 + 2*(t & 1)
    cfma(d, vLam, cur, vU + 2*t, 52)
    cur = d
a(f"""
v_and_b32 v54, 31, v{vL}
v_lshlrev_b32 v54, 3, v54
v_add_u32 v54, {L_SEG}, v54
s_lshl_b32 s{sT[0]}, s{sG}, 9
v_lshl_add_u32 v55, v{vL}, 3, s{sT[0]}
v_add_u32 v55, {L_SEG}, v55
ds_write_b64 v55, {vr(cur,2)}
s_waitcnt lgkmcnt(0)
s_barrier
""")
for sgi in range(8): a(f"ds_read_b64 {vr(56+2*sgi,2)}, v54 offset:{256*sgi}", "seg")
a(f"s_lshl_b32 s{sT[0]}, s{sG}, 1\nv_lshrrev_b32 v53, 5, v{vL}\nv_add_u32 v53, s{sT[0]}, v53\nv_mov_b32 v124, 0\nv_mov_b32 v125, 0")
a.wait(lg="seg")
cur = 56
for jx in range(1, 9):
    if jx < 8:
        a(f"v_cmp_eq_u32 vcc, {jx}, v53\nv_cndmask_b32 v124, v124, v{cur}, vcc\nv_cndmask_b32 v125, v125, v{cur+1}, vcc")
        d = 48 + 2*(jx & 1) if jx < 7 else 72
        cfma(d, vL16, cur, 56 + 2*jx, 56 + 2*jx)
        cur = d
lbl = newlabel("noe")
a(f"""
v_mov_b32 v74, s{sTAG}
v_mov_b32 v75, s{sTAG}
s_lshl_b32 s{sT[0]}, s{sMB}, 13
s_lshl_b32 s{sT[1]}, s{sJ}, 9
s_add_u32 s{sT[4]}, s{sT[0]}, s{sT[1]}
s_add_u32 s{sT[0]}, s{sT[4]}, {WS_EGR}
s_cmp_eq_u32 s{sG}, 0
s_cselect_b32 s{sT[1]}, 0, 0x7ff00000
v_add_u32 v76, s{sT[1]}, v31
s_mov_b32 exec_hi, 0
""")
a(f"buffer_store_dwordx4 v[72:75], v76, {srd(sWS)}, s{sT[0]} offen sc1", "e_st")
a("s_mov_b64 exec, -1")
stamp(4)
while cq: cdma(*cq.pop(0))
a(f"""
v_lshrrev_b32 v20, 5, v{vL}
v_bfe_u32 v21, v{vL}, 1, 3
v_xor_b32 v20, v20, v21
v_lshlrev_b32 v20, 4, v20
v_and_b32 v21, 31, v{vL}
v_lshl_add_u32 v20, v21, 7, v20
v_add_u32 v6, s{sT[8]}, v20
v_xor_b32 v7, 32, v6
v_xor_b32 v8, 64, v6
v_xor_b32 v9, 0x60, v6
""")
def breadsS(n, dst):
    jl, part, half = (n >> 2) & 1, (n >> 1) & 1, n & 1
    for db in range(2):
        a(f"ds_read_b128 {vr(dst+4*db,4)}, v{6+2*jl+half} offset:{part*8192+db*4096}", ("b", n))
a.wait(vm=("w", 0))
for n in range(8): breadsS(n, 128 + 8*n)
a("s_waitcnt lgkmcnt(0)")
cq = [(1, p, i) for p in range(2) for i in range(8)]
for _ in range(12): cdma(*cq.pop(0))
stamp(5)
a(f"""
v_lshrrev_b32 v21, 5, v{vL}
v_sub_u32 v21, s{sMB}, v21
v_subrev_u32 v21, 1, v21
v_and_b32 v20, 31, v{vL}
v_lshlrev_b32 v20, 4, v20
v_lshl_add_u32 v20, v21, 13, v20
s_lshl_b32 s{sT[1]}, s{sJ}, 9
s_add_u32 s{sT[0]}, s{sT[1]}, {WS_EGR}
s_mov_b32 s{sT[3]}, {SPIN}
v_mov_b32 v22, 0x7ff00000
""")
for i in range(8):
    a(f"v_subrev_u32 v{10+i}, {i*16384}, v20")
    a(f"v_cmp_le_i32 vcc, {2*i}, v21\nv_cndmask_b32 v{10+i}, v22, v{10+i}, vcc")
top, done = newlabel("lb"), newlabel("lbd")
a.label(top)
for i in range(8):
    a(f"buffer_load_dwordx4 {vr(48+4*i,4)}, v{10+i}, {srd(sWS)}, s{sT[0]} offen sc1")
a("s_waitcnt vmcnt(0)\ns_mov_b64 s[32:33], 0")
for i in range(8):
    a(f"v_cmp_ne_u32 vcc, s{sTAG}, v{48+4*i+2}\nv_cmp_le_i32 s[8:9], {2*i}, v21\ns_and_b64 vcc, vcc, s[8:9]\ns_or_b64 s[32:33], s[32:33], vcc")
a(f"s_cbranch_scc0 {done}")
a(f"s_sleep 2\ns_sub_u32 s{sT[3]}, s{sT[3]}, 1\ns_cmp_lg_u32 s{sT[3]}, 0\ns_cbranch_scc1 {top}")
a.label(done)
stamp(6)
cur = 48 + 4*7
for i in range(6, -1, -1):
    cfma(48 + 4*i, vL256, cur, 48 + 4*i, 48 + 4*i)
    cur = 48 + 4*i
a("v_mov_b32 v52, v48\nv_mov_b32 v53, v49")
a("v_permlane32_swap_b32 v48, v52\nv_permlane32_swap_b32 v49, v53")
cfma(56, vL128, 52, 48, 56)
cfma(58, vPW, 56, 124, 58)
cur = 58
for t in range(16):
    cfma(vU + 2*t, vLam, cur, vU + 2*t, vU + 2*t)
    cur = vU + 2*t
for m in range(8):
    a(f"v_cvt_pk_bf16_f32 v{32+m}, v{vU+4*m}, v{vU+4*m+2}")
    a(f"v_cvt_pk_bf16_f32 v{40+m}, -v{vU+4*m+1}, -v{vU+4*m+3}")
SCR = 12288
a(f"""
v_and_b32 v20, 31, v{vL}
v_lshrrev_b32 v21, 5, v{vL}
v_lshlrev_b32 v20, 6, v20
v_lshl_add_u32 v20, v21, 5, v20
v_add_u32 v20, s{sT[8]}, v20
ds_write_b128 v20, v[32:35] offset:{SCR}
ds_write_b128 v20, v[36:39] offset:{SCR+16}
ds_write_b128 v20, v[40:43] offset:{SCR+2048}
ds_write_b128 v20, v[44:47] offset:{SCR+2064}
v_bfe_u32 v22, v{vL}, 2, 2
v_lshl_add_u32 v21, v21, 3, v22
v_lshlrev_b32 v21, 6, v21
v_and_b32 v22, 1, v{vL}
v_lshl_add_u32 v21, v22, 5, v21
v_bfe_u32 v22, v{vL}, 4, 1
v_lshl_add_u32 v21, v22, 4, v21
v_bfe_u32 v22, v{vL}, 1, 1
v_lshl_add_u32 v21, v22, 3, v21
v_add_u32 v21, s{sT[8]}, v21
s_lshl_b32 s{sT[0]}, s{sMB}, 2
s_add_u32 s{sT[0]}, s{sT[0]}, s{sG}
s_mul_i32 s{sT[0]}, s{sT[0]}, {KS*1024}
s_lshl_b32 s{sT[1]}, s{sJ}, 12
s_add_u32 s{sT[0]}, s{sT[0]}, s{sT[1]}
s_add_u32 s{sT[4]}, s{sT[0]}, {WS_HID + 86*1024}
s_waitcnt lgkmcnt(0)
""")
for f in range(4):
    for u in range(2):
        a(f"ds_read_b64_tr_b16 {vr(48+4*f+2*u,2)}, v21 offset:{SCR + f*1024 + u*256}", ("t", f))
for f in range(4):
    a.wait(lg=("t", f))
    a(f"buffer_store_dwordx4 {vr(48+4*f,4)}, v31, {srd(sWS)}, s{sT[4]} offen offset:{f*1024} sc1", "hid_st")
stamp(7)
while cq: cdma(*cq.pop(0))
flag_store(1)
stamp(8)
hid_voffs()
a(f"s_lshl_b32 s{sT[0]}, s{sG}, 3\ns_lshl_b32 s{sT[6]}, 0xff, s{sT[0]}")
flag_poll(1)
stamp(9)
a(f"""
s_mul_i32 s{sT[4]}, s{sRB}, {2*KS*1024}
s_lshl_b32 s{sT[0]}, s{sG}, 14
s_add_u32 s{sT[4]}, s{sT[4]}, s{sT[0]}
s_add_u32 s{sT[4]}, s{sT[4]}, {WS_HID + 86*1024}
""")
def aoffS(n):
    if n % 4 == 0 and n > 0: a(f"s_add_u32 s{sT[4]}, s{sT[4]}, 4096")
    return sT[4], (n % 4)*1024, 2
p2_loop(16, 8, 128, breadsS, aoffS)
stamp(10)
resid_load()
dump(sT[8])

a.label("L_final")
a(f"""
v_and_b32 v8, 7, v232
v_xor_b32 v8, v8, v233
v_lshlrev_b32 v8, 4, v8
v_lshl_add_u32 v8, v232, 8, v8
v_add_u32 v9, {2*F2SZ}, v8
v_add_u32 v10, {L_S2}, v8
v_lshlrev_b32 v11, 11, v236
v_lshl_add_u32 v11, v233, 4, v11
s_lshl_b32 s{sT[0]}, s{sRB}, 17
s_lshl_b32 s{sT[1]}, s{sNB}, 8
s_add_u32 s{sT[0]}, s{sT[0]}, s{sT[1]}
s_add_u32 s{sT[1]}, s{sT[0]}, 0x10000
s_waitcnt vmcnt(0)
""")
a(f"""
v_lshlrev_b32 v140, 16, v246
v_and_b32 v141, s{sMASK}, v246
v_lshlrev_b32 v142, 16, v247
v_and_b32 v143, s{sMASK}, v247
""")
for tb in range(2):
    x, stt, o = 240 + 2*tb, 244 + tb, 128 + 4*tb
    a(f"""
    v_lshlrev_b32 v{o}, 16, v{x}
    v_and_b32 v{o+1}, s{sMASK}, v{x}
    v_lshlrev_b32 v{o+2}, 16, v{x+1}
    v_and_b32 v{o+3}, s{sMASK}, v{x+1}
    v_and_b32 v144, s{sMASK}, v{stt}
    v_lshlrev_b32 v145, 16, v{stt}
    v_rcp_f32 v145, v145
    """)
    for i in range(4): a(f"v_sub_f32 v{148+i}, v{o+i}, v144")
    def rnd():
        a("v_cvt_pk_bf16_f32 v152, v148, v149\nv_cvt_pk_bf16_f32 v153, v150, v151")
        a(f"v_lshlrev_b32 v148, 16, v152\nv_and_b32 v149, s{sMASK}, v152\nv_lshlrev_b32 v150, 16, v153\nv_and_b32 v151, s{sMASK}, v153")
    rnd()
    for i in range(4): a(f"v_mul_f32 v{148+i}, v{148+i}, v145")
    rnd()
    for i in range(4): a(f"v_mul_f32 v{148+i}, v{148+i}, v{140+i}")
    rnd()
    for i in range(4): a(f"v_add_f32 v{o+i}, v{o+i}, v{148+i}")
a("s_waitcnt lgkmcnt(0)\ns_barrier")
stamp(11)
for tb in range(2):
    for q in range(8):
        if q < 2: base, off = 8, q*F2SZ
        elif q < 4: base, off = 9, (q-2)*F2SZ
        else: base, off = 10, (q-4)*S2SZ
        a(f"ds_read_b128 {vr(160+32*tb+4*q,4)}, v{base} offset:{off + tb*8192}", ("f", tb, q // 4))
for tb in range(2):
    o = 128 + 4*tb
    for hq in range(2):
        a.wait(lg=("f", tb, hq))
        for q in range(4*hq, 4*hq + 4):
            r = 160 + 32*tb + 4*q
            a(f"v_pk_add_f32 {vr(o,2)}, {vr(o,2)}, {vr(r,2)}\nv_pk_add_f32 {vr(o+2,2)}, {vr(o+2,2)}, {vr(r+2,2)}")
    a(f"buffer_store_dwordx4 {vr(o,4)}, v11, {srd(sOUT)}, s{sT[tb]} offen")
a(f"s_cmp_lg_u32 s2, 0xff\ns_cbranch_scc1 L_noep\ns_cmp_lg_u32 s{sW}, 0\ns_cbranch_scc1 L_noep")
a(f"v_mov_b32 v20, s{sTAG}\nv_mov_b32 v21, 0\ns_mov_b64 exec, 1")
a(f"buffer_store_dword v20, v21, {srd(sWS)}, 0 offen sc1")
a("s_mov_b64 exec, -1")
a.label("L_noep")
if STAMPS:
    a("s_waitcnt vmcnt(0)")
    stamp(12)
    a(f"s_waitcnt lgkmcnt(0)\ns_lshl_b32 s{sT[0]}, s2, 3\ns_add_u32 s{sT[0]}, s{sT[0]}, s{sW}\ns_lshl_b32 s{sT[0]}, s{sT[0]}, 7\ns_add_u32 s{sT[0]}, s{sT[0]}, {WS_STAMP}")
    a("v_mov_b32 v21, 0\ns_mov_b64 exec, 1")
    for i, r in enumerate(STAMP_REGS[:13]):
        a(f"v_mov_b32 v20, s{r}\nbuffer_store_dword v20, v21, {srd(sWS)}, s{sT[0]} offen offset:{4*i}")
if OPT["dbg"]:
    a("s_memrealtime s[8:9]\ns_waitcnt lgkmcnt(0)")
    mksrd(sX, 34, 256)
    a("s_mov_b64 exec, 1\nv_mov_b32 v21, 0\nv_mov_b32 v20, s8")
    a(f"buffer_atomic_umax v20, v21, {srd(sX)}, 0 offen")
    a("s_not_b32 s9, s84\nv_mov_b32 v22, s9")
    a(f"buffer_atomic_umax v22, v21, {srd(sX)}, 0 offen offset:4")
    a("v_mov_b32 v23, s84")
    a(f"buffer_atomic_umax v23, v21, {srd(sX)}, 0 offen offset:8")
    a(f"s_cmp_lg_u32 s2, 0x85\ns_cbranch_scc1 L_end\ns_cmp_lg_u32 s{sW}, 5\ns_cbranch_scc1 L_end")
    for i, r in enumerate(STAMP_REGS[2:13]):
        a(f"s_sub_u32 s9, s{r}, s86\nv_mov_b32 v20, s9\nbuffer_store_dword v20, v21, {srd(sX)}, 0 offen offset:{16+4*i}")
    a(f"s_sub_u32 s9, s8, s84\nv_mov_b32 v20, s9\nbuffer_store_dword v20, v21, {srd(sX)}, 0 offen offset:12")
a.label("L_end")
a("s_endpgm")
a.raw(f""".section .rodata,"a"
.p2align 6
.amdhsa_kernel {NAME}_kernel
  .amdhsa_next_free_vgpr 256
  .amdhsa_next_free_sgpr 102
  .amdhsa_accum_offset 256
  .amdhsa_group_segment_fixed_size 0
  .amdhsa_kernarg_size 120
  .amdhsa_user_sgpr_count 2
  .amdhsa_user_sgpr_kernarg_segment_ptr 1
  .amdhsa_system_sgpr_workgroup_id_x 1
.end_amdhsa_kernel""")
open(sys.argv[1], "w").write(a.text())
print("lines", len(a.lines), "nops", a.nnop, file=sys.stderr)
```

```python
import sys
from asmlib import Asm
NAME = "parallel_sum__ssm_conv_s5__dense_activation_silu__prompt"
OPT = dict(stamps=0, dbg=0, pad=0)
for a in sys.argv[2:]:
    k, v = a.split("="); OPT[k] = int(v)
STAMPS = OPT["stamps"]

WS_EPOCH = 0
WS_FLAG  = 0x1000
WS_STAT  = 0x4000
WS_EGR   = 0x10000
WS_STAMP = 0x40000
WS_HID   = 0x100000
WS_SIZE  = WS_HID + 64*150*1024
KS = 150
L_X, L_BW, L_W1 = 0, 65536, 98304
L_MISC = 155648
L_CS   = L_MISC
L_RB   = L_MISC + 4096
L_SEG  = L_MISC + 4608
L_F2, F2SZ = 0, 22528
L_S2, S2SZ = 90112, 16384
LDS_BYTES = 163840
sX, sB, sW1, sW2, sCR, sCI, sOUT, sWS = 40, 44, 48, 52, 56, 60, 64, 68
sW, sG, sMB, sJ, sRB, sNB, sTAG, sSB = 72, 73, 74, 75, 76, 77, 78, 79
sMASK = 38
sT = [80, 81, 82, 83, 3, 4, 5, 6, 7, 39]
srd = lambda r: f"s[{r}:{r+3}]"
vr = lambda a, n: f"v[{a}:{a+n-1}]"
STAMP_REGS = [84,86,88,90,92,94,96,98,100,14,16,18,20,26,28,30]

a = Asm()
nstamp = [0]
def stamp(i):
    if STAMPS: a(f"s_memtime s[{STAMP_REGS[i]}:{STAMP_REGS[i]+1}]")

def mksrd(r, p, size):
    a(f"s_mov_b32 s{r}, s{p}\ns_mov_b32 s{r+1}, s{p+1}\ns_mov_b32 s{r+2}, {hex(size)}\ns_mov_b32 s{r+3}, 0x20000")

def cmul(d, x, y):
    a(f"v_pk_mul_f32 {vr(d,2)}, {vr(x,2)}, {vr(y,2)} op_sel:[0,0] op_sel_hi:[0,1]")
    a(f"v_pk_fma_f32 {vr(d,2)}, {vr(x,2)}, {vr(y,2)}, {vr(d,2)} op_sel:[1,1,0] op_sel_hi:[1,0,1] neg_lo:[1,0,0]")
def cfma(d, x, y, z, t):
    a(f"v_pk_fma_f32 {vr(t,2)}, {vr(x,2)}, {vr(y,2)}, {vr(z,2)} op_sel:[0,0,0] op_sel_hi:[0,1,1]")
    a(f"v_pk_fma_f32 {vr(d,2)}, {vr(x,2)}, {vr(y,2)}, {vr(t,2)} op_sel:[1,1,0] op_sel_hi:[1,0,1] neg_lo:[1,0,0]")

def dpp_sum(v):
    for m in ("row_shr:1","row_shr:2","row_shr:4","row_shr:8"):
        a(f"v_add_f32_dpp v{v}, v{v}, v{v} {m} row_mask:0xf bank_mask:0xf bound_ctrl:0")
    a(f"v_add_f32_dpp v{v}, v{v}, v{v} row_bcast:15 row_mask:0xa bank_mask:0xf")
    a(f"v_add_f32_dpp v{v}, v{v}, v{v} row_bcast:31 row_mask:0xc bank_mask:0xf")

uid = [0]
def newlabel(p):
    uid[0] += 1; return f"L_{p}_{uid[0]}"

SPIN = 0x20000
def spin_tail(top, done):
    a(f"s_sleep 2\ns_sub_u32 s{sT[3]}, s{sT[3]}, 1\ns_cmp_lg_u32 s{sT[3]}, 0\ns_cbranch_scc1 {top}")

hdr = open("cdna_kernels/%s.s.ref" % NAME).read().split("; Override")[0]
a.raw(hdr.rstrip())
a.raw(f"; @launch grid=(256,1,1) block=(512,1,1) lds={LDS_BYTES}")
a.raw('.amdgcn_target "amdgcn-amd-amdhsa--gfx950"\n.text\n.globl %s_kernel\n.p2align 8\n.type %s_kernel,@function' % (NAME, NAME))
a.label(NAME + "_kernel")
a("s_cmp_ge_u32 s2, 0x100\ns_cbranch_scc1 L_end")
a("s_load_dwordx16 s[8:23], s[0:1], 0\ns_load_dwordx8 s[24:31], s[0:1], 64\ns_load_dwordx4 s[32:35], s[0:1], 96\ns_load_dwordx2 s[36:37], s[0:1], 112")
if STAMPS or OPT["pad"]:
    a("s_memrealtime s[84:85]\ns_memtime s[86:87]")
a(f"""
v_lshrrev_b32 v2, 6, v0
v_and_b32 v1, 63, v0
v_readfirstlane_b32 s{sW}, v2
s_and_b32 s{sT[0]}, s2, 7
s_lshr_b32 s{sT[1]}, s2, 3
s_and_b32 s{sMB}, s{sT[0]}, 1
s_lshl_b32 s{sMB}, s{sMB}, 3
s_and_b32 s{sNB}, s{sT[1]}, 7
s_add_u32 s{sMB}, s{sMB}, s{sNB}
s_lshr_b32 s{sJ}, s{sT[0]}, 1
s_lshl_b32 s{sJ}, s{sJ}, 2
s_lshr_b32 s{sT[2]}, s{sT[1]}, 3
s_add_u32 s{sJ}, s{sJ}, s{sT[2]}
s_lshl_b32 s{sRB}, s{sT[0]}, 2
s_add_u32 s{sRB}, s{sRB}, s{sT[2]}
s_mul_i32 s{sSB}, s{sJ}, 3
s_lshl_b32 s{sT[2]}, s{sJ}, 1
s_add_u32 s{sT[2]}, s{sT[2]}, 11
s_min_u32 s{sSB}, s{sSB}, s{sT[2]}
s_mov_b32 s{sMASK}, 0xffff0000
s_and_b32 s{sG}, s{sW}, 3
""")
vL = 1
vH, vI, vF, vTmp, vTmp2, vTmp3 = 20, 21, 22, 23, 24, 25
vXA, vST, vSTA = 2, 28, 30
vROW = 128
a(f"""
v_lshrrev_b32 v{vH}, 5, v{vL}
v_and_b32 v{vI}, 31, v{vL}
v_bfe_u32 v{vF}, v{vL}, 1, 3
v_lshlrev_b32 v31, 4, v{vL}
""")
a(f"""
s_lshl_b32 s{sT[0]}, s{sG}, 1
v_xor_b32 v{vTmp}, v{vH}, v{vF}
v_xor_b32 v{vTmp}, s{sT[0]}, v{vTmp}
v_lshlrev_b32 v{vTmp}, 4, v{vTmp}
v_lshl_add_u32 v{vTmp}, v{vI}, 7, v{vTmp}
s_lshl_b32 s{sT[0]}, s{sG}, 12
v_add_u32 v{vXA}, s{sT[0]}, v{vTmp}
v_xor_b32 v{vXA+1}, 32, v{vXA}
v_xor_b32 v{vXA+2}, 64, v{vXA}
v_xor_b32 v{vXA+3}, 0x60, v{vXA}
""")
vTI = 26
a(f"""
v_bfe_u32 v{vTmp2}, v{vL}, 2, 1
v_bfe_u32 v{vTmp3}, v{vL}, 3, 2
v_and_b32 v{vTI}, 3, v{vL}
v_lshl_add_u32 v{vTI}, v{vTmp2}, 4, v{vTI}
v_lshl_add_u32 v{vTI}, v{vTmp3}, 2, v{vTI}
v_lshlrev_b32 v{vSTA}, 3, v{vTI}
""")
a(f"""
v_and_b32 v{vTmp2}, 7, v{vL}
v_lshrrev_b32 v{vTmp3}, 4, v{vL}
v_xor_b32 v27, v{vTmp2}, v{vTmp3}
v_lshlrev_b32 v27, 4, v27
""")
a("s_waitcnt lgkmcnt(0)")
a(f"s_load_dword s{sTAG}, s[36:37], {WS_EPOCH}")
mksrd(sX, 8, 0x200000)
a(f"""
s_lshl_b32 s{sT[0]}, s{sMB}, 7
s_lshl_b32 s{sT[1]}, s{sJ}, 3
s_add_u32 s{sT[0]}, s{sT[0]}, s{sT[1]}
s_add_u32 s{sT[4]}, s{sT[0]}, s{sW}
s_lshl_b32 s{sT[0]}, s{sT[4]}, 10
""")
a(f"buffer_load_dwordx4 {vr(vROW,4)}, v31, {srd(sX)}, s{sT[0]} offen", "row")
a(f"s_cmp_ge_u32 s{sG}, 2\ns_cselect_b32 s{sB}, s16, s14\ns_cselect_b32 s{sB+1}, s17, s15\ns_mov_b32 s{sB+2}, 0x80000\ns_mov_b32 s{sB+3}, 0x20000")
mksrd(sW1, 28, 512*1376*2)
mksrd(sW2, 30, 512*1376*2)
mksrd(sCR, 18, 0x80000)
mksrd(sCI, 20, 0x80000)
mksrd(sOUT, 32, 0x400000)
mksrd(sWS, 36, WS_SIZE)
a(f"s_cmp_ge_u32 s{sW}, 4\ns_cbranch_scc1 L_S")
st0 = a.fork()

def stats():
    e = 132
    for i in range(4):
        a(f"v_lshlrev_b32 v{e+2*i}, 16, v{vROW+i}\nv_and_b32 v{e+2*i+1}, s{sMASK}, v{vROW+i}")
    s = 140
    a(f"v_add_f32 v{s}, v{e}, v{e+1}\nv_add_f32 v{s+1}, v{e+2}, v{e+3}\nv_add_f32 v{s+2}, v{e+4}, v{e+5}\nv_add_f32 v{s+3}, v{e+6}, v{e+7}")
    a(f"v_add_f32 v{s}, v{s}, v{s+1}\nv_add_f32 v{s+2}, v{s+2}, v{s+3}\nv_add_f32 v{s}, v{s}, v{s+2}")
    dpp_sum(s)
    a(f"v_readlane_b32 s{sT[0]}, v{s}, 63")
    a(f"v_mov_b32 v{s+1}, 0x3b000000\nv_mul_f32 v{s+1}, s{sT[0]}, v{s+1}")
    for i in range(8): a(f"v_sub_f32 v{e+i}, v{e+i}, v{s+1}")
    a(f"v_mul_f32 v{s}, v{e}, v{e}\nv_mul_f32 v{s+2}, v{e+1}, v{e+1}")
    for i in range(2, 8): a(f"v_fmac_f32 v{s+(i&1)*2}, v{e+i}, v{e+i}")
    a(f"v_add_f32 v{s}, v{s}, v{s+2}")
    dpp_sum(s)
    a(f"""
    v_mul_f32 v{s}, 0x3b000000, v{s}
    v_cvt_pk_bf16_f32 v{s+2}, v{s}, v{s+1}
    v_lshlrev_b32 v{s}, 16, v{s+2}
    v_add_f32 v{s}, 0x3727c5ac, v{s}
    v_cvt_pk_bf16_f32 v{s}, v{s}, v{s}
    v_lshlrev_b32 v{s}, 16, v{s}
    v_sqrt_f32 v{s}, v{s}
    v_cvt_pk_bf16_f32 v{s+4}, v{s}, v{s+1}
    s_waitcnt lgkmcnt(0)
    s_add_u32 s{sTAG}, s{sTAG}, 0x9e3779b9
    v_mov_b32 v{s+5}, s{sTAG}
    s_lshl_b32 s{sT[0]}, s{sT[4]}, 3
    s_add_u32 s{sT[0]}, s{sT[0]}, {WS_STAT}
    v_mov_b32 v{s+6}, 0
    s_mov_b32 exec_lo, 0
    s_mov_b32 exec_hi, 0x80000000
    """)
    a(f"buffer_store_dwordx2 {vr(s+4,2)}, v{s+6}, {srd(sWS)}, s{sT[0]} offen sc1", "stat_st")
    a("s_mov_b64 exec, -1")

def stat_load(tag):
    a(f"buffer_load_dwordx2 {vr(vST,2)}, v{vSTA}, {srd(sWS)}, s{sT[5]} offen sc1", tag)
def stat_off():
    a(f"s_lshl_b32 s{sT[5]}, s{sMB}, 10\ns_lshl_b32 s{sT[0]}, s{sG}, 8\ns_add_u32 s{sT[5]}, s{sT[5]}, s{sT[0]}\ns_add_u32 s{sT[5]}, s{sT[5]}, {WS_STAT}")
def stat_check():
    top, done = newlabel("stp"), newlabel("std")
    a(f"s_mov_b32 s{sT[3]}, {SPIN}")
    a.wait(vm="stat_ld")
    a.label(top)
    a(f"v_cmp_ne_u32 vcc, s{sTAG}, v{vST+1}\ns_cmp_eq_u64 vcc, 0\ns_cbranch_scc1 {done}")
    st = a.fork()
    a("s_sleep 2")
    stat_load(None)
    a(f"s_waitcnt vmcnt(0)\ns_sub_u32 s{sT[3]}, s{sT[3]}, 1\ns_cmp_lg_u32 s{sT[3]}, 0\ns_cbranch_scc1 {top}")
    a.label(done)
    a.restore(st)

def colsum_ops(frags, vlo, vhi, first):
    ops = []
    for n, (r, b) in enumerate(frags):
        t0, t1 = 20 + 2*(n & 1), 21 + 2*(n & 1)
        ops.append(f"v_lshlrev_b32 v{t0}, 16, v{r}")
        ops.append(f"v_and_b32 v{t1}, s{sMASK}, v{r}")
        ops.append(f"v_add_f32 v{vlo+b}, v{vlo+b}, v{t0}")
        ops.append(f"v_add_f32 v{vhi+b}, v{vhi+b}, v{t1}")
    return ops

def p1_loop(nb, reads, mfma, dma, wset, vlo, vhi):
    a.wait(vm=("c", 0)); a("s_barrier")
    reads(0)
    pend_dma = []; pend_cs = []
    for n in range(32):
        c, s = n >> 2, n & 3
        if s == 0:
            if c + 3 < 8: pend_dma = dma(c + 3)
            pend_cs = colsum_ops([(wset(n) + 4*b + i, b) for b in range(nb) for i in range(4)], vlo, vhi, c == 0)
        if n + 1 < 32:
            if s == 3:
                a.wait(vm=("c", c + 1), lg=("r", n)); a("s_barrier")
                reads(n + 1)
            else:
                reads(n + 1); a.wait(lg=("r", n))
        else:
            a.wait(lg=("r", n))
        if n == 20: stat_load("stat_ld")
        ncs = (len(pend_cs) + (2 - s)) // (3 - s) if s < 3 else 0
        per = (ncs + nb - 1) // nb
        nd = (len(pend_dma) + (2 - s)) // (3 - s) if s < 3 else 0
        for b in range(nb):
            mfma(n, b)
            if nd > 0 and pend_dma:
                pend_dma.pop(0)(); nd -= 1
            for _ in range(min(per, ncs)):
                a(pend_cs.pop(0)); ncs -= 1
        assert s < 2 or (not pend_cs and not pend_dma), (n, len(pend_cs), len(pend_dma))

def cs_exchange(nb, stream, vlo, vhi, dst):
    for b in range(nb):
        a(f"v_add_f32 v{vlo+b}, v{vlo+b}, v{vhi+b}")
    for b in range(nb):
        a(f"v_mov_b32 v{vhi+b}, v{vlo+b}")
    for b in range(nb):
        a(f"v_permlane32_swap_b32 v{vlo+b}, v{vhi+b}")
    for b in range(nb):
        a(f"v_add_f32 v{20+b}, v{vlo+b}, v{vhi+b}")
    a(f"""
    v_and_b32 v24, 31, v{vL}
    v_lshlrev_b32 v24, 4, v24
    v_add_u32 v24, {L_CS + stream*2048}, v24
    s_lshl_b32 s{sT[0]}, s{sG}, 9
    v_add_u32 v25, s{sT[0]}, v24
    ds_write_b128 v25, v[20:23]
    s_waitcnt lgkmcnt(0)
    s_barrier
    """)
    for g in range(4): a(f"ds_read_b128 {vr(32+4*g,4)}, v24 offset:{512*g}", "cs")

def cs_finish(nb, dst):
    a.wait(lg="cs")
    for b in range(nb):
        a(f"v_add_f32 v{32+b}, v{32+b}, v{36+b}\nv_add_f32 v{40+b}, v{40+b}, v{44+b}")
    for b in range(nb):
        a(f"v_add_f32 v{32+b}, v{32+b}, v{40+b}")
    for b in range(nb):
        a(f"v_and_b32 v{36+b}, s{sMASK}, v{32+b}\nv_sub_f32 v{32+b}, v{32+b}, v{36+b}\nv_cvt_pk_bf16_f32 v{dst+4*b}, v{32+b}, v{36+b}")
        a(f"v_mov_b32 v{dst+4*b+1}, 0\nv_mov_b32 v{dst+4*b+2}, 0\nv_mov_b32 v{dst+4*b+3}, 0")

def xaug(dst):
    a(f"""
    v_and_b32 v{dst}, s{sMASK}, v{vST}
    v_cvt_pk_bf16_f32 v{dst}, -v{dst}, -v{dst}
    v_cmp_gt_u32 vcc, 32, v{vL}
    v_mov_b32 v{dst+1}, 0
    v_mov_b32 v{dst+2}, 0
    v_mov_b32 v{dst+3}, 0
    v_cndmask_b32 v{dst}, 0, v{dst}, vcc
    """)

def flag_store(stream):
    a(f"""
    s_lshl_b32 s{sT[0]}, s{sMB}, 1
    s_lshr_b32 s{sT[1]}, s{sG}, 1
    s_add_u32 s{sT[0]}, s{sT[0]}, s{sT[1]}
    s_lshl_b32 s{sT[0]}, s{sT[0]}, 5
    s_lshl_b32 s{sT[1]}, s{sJ}, 1
    s_add_u32 s{sT[0]}, s{sT[0]}, s{sT[1]}
    s_and_b32 s{sT[1]}, s{sG}, 1
    s_add_u32 s{sT[0]}, s{sT[0]}, s{sT[1]}
    s_lshl_b32 s{sT[0]}, s{sT[0]}, 2
    s_add_u32 s{sT[0]}, s{sT[0]}, {WS_FLAG + stream*4096}
    v_mov_b32 v20, s{sTAG}
    v_mov_b32 v21, 0
    """)
    a.wait(vm="hid_st")
    a("s_mov_b64 exec, 1")
    a(f"buffer_store_dword v20, v21, {srd(sWS)}, s{sT[0]} offen sc1", "flag_st")
    a("s_mov_b64 exec, -1")

def flag_poll(stream):
    top, done = newlabel("fp"), newlabel("fd")
    a(f"""
    s_lshl_b32 s{sT[0]}, s{sRB}, 7
    s_add_u32 s{sT[0]}, s{sT[0]}, {WS_FLAG + stream*4096}
    v_and_b32 v20, 31, v{vL}
    v_lshlrev_b32 v20, 2, v20
    s_mov_b32 s{sT[3]}, {SPIN}
    """)
    a.label(top)
    a(f"buffer_load_dword v21, v20, {srd(sWS)}, s{sT[0]} offen sc1")
    a(f"s_waitcnt vmcnt(0)\nv_cmp_ne_u32 vcc, s{sTAG}, v21\ns_and_b32 s{sT[1]}, vcc_lo, s{sT[6]}\ns_cbranch_scc0 {done}")
    a(f"s_sleep 2\ns_sub_u32 s{sT[3]}, s{sT[3]}, 1\ns_cmp_lg_u32 s{sT[3]}, 0\ns_cbranch_scc1 {top}")
    a.label(done)

ACC2, ABUF, DA, BT = 64, 16, 6, 216
def p2_loop(nsteps, held, heldreg, breads, aoff):
    def aload(n):
        sg, imm, va = aoff(n)
        r = ABUF + 8*(n % DA)
        a(f"buffer_load_dwordx4 {vr(r,4)}, v{va}, {srd(sWS)}, s{sg} offen offset:{imm} sc1", ("a", n))
        a(f"buffer_load_dwordx4 {vr(r+4,4)}, v{va+1}, {srd(sWS)}, s{sg} offen offset:{imm} sc1", ("a", n))
    for n in range(min(DA, nsteps)): aload(n)
    for n in range(nsteps):
        a.wait(vm=("a", n))
        if held <= n + 1 < nsteps: breads(n + 1, BT + 8*((n + 1) & 1))
        if n >= held: a.wait(lg=("b", n))
        w = heldreg + 8*n if n < held else BT + 8*(n & 1)
        r = ABUF + 8*(n % DA)
        for tb in range(2):
            for db in range(2):
                acc = ACC2 + 16*(2*db + tb)
                c = "0" if n == 0 else vr(acc, 16)
                a(f"v_mfma_f32_32x32x16_bf16 {vr(acc,16)}, {vr(w+4*db,4)}, {vr(r+4*tb,4)}, {c}")
        if n + DA < nsteps: aload(n + DA)

def hid_voffs():
    a(f"v_lshlrev_b32 v2, 4, v{vL}\nv_add_u32 v3, {KS*1024}, v2")

def resid_load():
    a(f"""
    v_lshrrev_b32 v232, 4, v0
    v_and_b32 v233, 15, v0
    v_bfe_u32 v234, v232, 2, 1
    v_lshrrev_b32 v235, 3, v232
    v_and_b32 v236, 3, v232
    v_lshl_add_u32 v236, v234, 4, v236
    v_lshl_add_u32 v236, v235, 2, v236
    v_lshlrev_b32 v234, 10, v236
    v_lshl_add_u32 v234, v233, 3, v234
    v_lshlrev_b32 v235, 3, v236
    s_lshl_b32 s{sT[0]}, s{sRB}, 16
    s_lshl_b32 s{sT[1]}, s{sNB}, 7
    s_add_u32 s{sT[0]}, s{sT[0]}, s{sT[1]}
    s_add_u32 s{sT[2]}, s{sT[0]}, 0x8000
    """)
    a(f"buffer_load_dwordx2 v[240:241], v234, {srd(sX)}, s{sT[0]} offen", "res")
    a(f"buffer_load_dwordx2 v[242:243], v234, {srd(sX)}, s{sT[2]} offen", "res")
    a(f"s_lshl_b32 s{sT[0]}, s{sRB}, 9\ns_add_u32 s{sT[0]}, s{sT[0]}, {WS_STAT}")
    a(f"buffer_load_dword v244, v235, {srd(sWS)}, s{sT[0]} offen sc1", "res")
    a(f"buffer_load_dword v245, v235, {srd(sWS)}, s{sT[0]} offen offset:256 sc1", "res")
    a(f"v_lshlrev_b32 v237, 3, v233\nv_add_u32 v237, s{sT[1]}, v237")
    a(f"global_load_dwordx2 v[246:247], v237, s[24:25]", "res")

def dump(base_expr_sgpr):
    a(f"""
    v_and_b32 v4, 31, v{vL}
    v_lshrrev_b32 v5, 5, v{vL}
    v_and_b32 v6, 7, v{vL}
    v_xor_b32 v5, v5, v6
    v_lshlrev_b32 v5, 4, v5
    v_lshl_add_u32 v4, v4, 8, v5
    v_add_u32 v4, s{base_expr_sgpr}, v4
    v_xor_b32 v5, 32, v4
    v_xor_b32 v6, 64, v4
    v_xor_b32 v7, 0x60, v4
    """)
    for db in range(2):
        for tb in range(2):
            for g in range(4):
                a(f"ds_write_b128 v{4+g}, {vr(ACC2+16*(2*db+tb)+4*g,4)} offset:{tb*8192+db*128}")

vWA, vDX = 6, 10
a(f"""
v_bfe_u32 v{vTmp}, v{vL}, 3, 2
v_lshl_add_u32 v{vTmp}, v{vH}, 4, v{vTmp}
v_lshl_add_u32 v{vDX}, v{vTmp}, 10, v27
v_add_u32 v{vDX+2}, 0x1800, v{vDX}
v_xor_b32 v{vDX+1}, 64, v{vDX}
v_add_u32 v{vDX+1}, 0xc00, v{vDX+1}
v_add_u32 v{vDX+3}, 0x1800, v{vDX+1}
s_lshl_b32 s{sT[7]}, s{sMB}, 17
s_lshl_b32 s{sT[0]}, s{sG}, 15
s_add_u32 s{sT[7]}, s{sT[7]}, s{sT[0]}
s_lshl_b32 s{sT[8]}, s{sG}, 12
""")
def dmaF(c):
    def one(i):
        def f():
            if i == 0: a(f"s_add_u32 m0, s{sT[8]}, {L_X + (c&3)*16384}\ns_add_u32 s{sT[9]}, s{sT[7]}, {c*128}")
            a(f"buffer_load_dwordx4 v{vDX+i}, {srd(sX)}, s{sT[9]} offen offset:{1024*i} lds", ("c", c))
        return f
    return [one(i) for i in range(4)]
for f in dmaF(0): f()
a("s_barrier")
for f in dmaF(1): f()
a(f"""
v_bfe_u32 v{vTmp}, v{vL}, 2, 2
v_lshl_add_u32 v{vTmp}, v{vH}, 3, v{vTmp}
v_lshlrev_b32 v{vTmp}, 6, v{vTmp}
v_bfe_u32 v{vTmp2}, v{vL}, 4, 1
v_lshl_add_u32 v{vTmp}, v{vTmp2}, 5, v{vTmp}
v_and_b32 v{vTmp2}, 1, v{vL}
v_lshl_add_u32 v{vTmp}, v{vTmp2}, 4, v{vTmp}
v_bfe_u32 v{vTmp2}, v{vL}, 1, 1
v_lshl_add_u32 v{vTmp}, v{vTmp2}, 3, v{vTmp}
""")
for s in range(4):
    a(f"s_xor_b32 s{sT[0]}, s{sG}, {s}\ns_mul_i32 s{sT[0]}, s{sT[0]}, 3072\ns_add_u32 s{sT[0]}, s{sT[0]}, {L_W1}\nv_add_u32 v{vWA+s}, s{sT[0]}, v{vTmp}")
for r in range(14, 20): a(f"v_mov_b32 v{r}, 0")
stat_off()
a.wait(vm="row")
stats()
a("s_barrier")
for f in dmaF(2): f()
stamp(2)
ACC1 = 80
wsetF = lambda n: (40, 52, 64, 52)[n & 3]
def readsF(n):
    c, s = n >> 2, n & 3
    a(f"ds_read_b128 {vr(32+4*(n&1),4)}, v{vXA+s} offset:{(c&3)*16384}", ("r", n))
    for b in range(3):
        for u in range(2):
            a(f"ds_read_b64_tr_b16 {vr(wsetF(n)+4*b+2*u,2)}, v{vWA+s} offset:{(c&3)*12288+b*1024+u*256}", ("r", n))
def mfmaF(n, b):
    acc = vr(ACC1+16*b, 16)
    a(f"v_mfma_f32_32x32x16_bf16 {acc}, {vr(wsetF(n)+4*b,4)}, {vr(32+4*(n&1),4)}, {'0' if n == 0 else acc}")
p1_loop(3, readsF, mfmaF, dmaF, wsetF, 14, 17)
stamp(3)
cs_exchange(3, 0, 14, 17, 52)
a(f"""
v_lshrrev_b32 v4, 3, v{vL}
v_and_b32 v5, 7, v{vL}
v_bfe_u32 v6, v{vL}, 4, 1
v_lshlrev_b32 v6, 2, v6
v_xor_b32 v5, v5, v6
v_lshlrev_b32 v5, 4, v5
v_lshl_add_u32 v4, v4, 10, v5
s_mul_i32 s{sT[7]}, s{sG}, {352*1024}
s_lshl_b32 s{sT[0]}, s{sNB}, 7
s_add_u32 s{sT[7]}, s{sT[7]}, s{sT[0]}
s_mul_i32 s{sT[8]}, s{sG}, {F2SZ}
""")
def w2dma(i):
    a(f"s_add_u32 m0, s{sT[8]}, {L_F2 + (i % 22)*1024}\ns_add_u32 s{sT[9]}, s{sT[7]}, {i*8192}")
    a(f"buffer_load_dwordx4 v4, {srd(sW2)}, s{sT[9]} offen lds", ("w", i // 22))
wq = list(range(22))
for _ in range(2): w2dma(wq.pop(0))
stat_check()
xaug(48)
cs_finish(3, 52)
for b in range(3):
    acc = vr(ACC1+16*b, 16)
    a(f"v_mfma_f32_32x32x16_bf16 {acc}, {vr(52+4*b,4)}, v[48:51], {acc}")
a(f"""
v_lshlrev_b32 v34, 16, v{vST}
v_rcp_f32 v32, v34
v_mul_f32 v32, 0xbfb8aa3b, v32
s_lshl_b32 s{sT[0]}, s{sMB}, 2
s_add_u32 s{sT[0]}, s{sT[0]}, s{sG}
s_mul_i32 s{sT[0]}, s{sT[0]}, {KS*1024}
s_lshl_b32 s{sT[1]}, s{sSB}, 11
s_add_u32 s{sT[0]}, s{sT[0]}, s{sT[1]}
s_add_u32 s{sT[4]}, s{sT[0]}, {WS_HID}
s_add_u32 s{sT[5]}, s{sT[4]}, 4096
s_cmp_ge_u32 s{sJ}, 11
s_cselect_b32 s{sT[0]}, 0x7ff00000, 0
v_add_u32 v5, s{sT[0]}, v31
""")
for b in range(3):
    A = ACC1 + 16*b
    for f in range(2):
        z = 36 + 8*f * 1
        o = 56 + 4*((2*b+f) & 3)
        for m in range(4):
            a(f"v_pk_mul_f32 {vr(z+2*m,2)}, {vr(A+8*f+2*m,2)}, v[32:33] op_sel_hi:[1,0]")
        for m in range(8): a(f"v_exp_f32 v{z+m}, v{z+m}")
        for m in range(4):
            a(f"v_pk_fma_f32 {vr(z+2*m,2)}, {vr(z+2*m,2)}, v[34:35], v[34:35] op_sel_hi:[1,0,0]")
        for m in range(8): a(f"v_rcp_f32 v{z+m}, v{z+m}")
        for m in range(4):
            a(f"v_pk_mul_f32 {vr(z+2*m,2)}, {vr(z+2*m,2)}, {vr(A+8*f+2*m,2)}")
        for m in range(4):
            a(f"v_cvt_pk_bf16_f32 v{o+m}, v{z+2*m}, v{z+2*m+1}")
        sg, imm = (sT[4], b*2048 + f*1024) if b < 2 else (sT[5], f*1024)
        a(f"buffer_store_dwordx4 {vr(o,4)}, v{31 if b < 2 else 5}, {srd(sWS)}, s{sg} offen offset:{imm} sc1", "hid_st")
        for _ in range(2):
            if wq: w2dma(wq.pop(0))
    if b == 0: a("s_barrier")
stamp(4)
while wq: w2dma(wq.pop(0))
flag_store(0)
stamp(5)
a(f"""
v_lshrrev_b32 v7, 5, v{vL}
v_bfe_u32 v8, v{vL}, 2, 2
v_lshl_add_u32 v7, v7, 3, v8
v_lshlrev_b32 v7, 7, v7
v_bfe_u32 v8, v{vL}, 3, 1
v_lshl_add_u32 v7, v8, 6, v7
v_bfe_u32 v8, v{vL}, 4, 1
v_lshl_add_u32 v7, v8, 5, v7
v_and_b32 v8, 3, v{vL}
v_lshl_add_u32 v7, v8, 3, v7
v_add_u32 v5, s{sT[8]}, v7
v_xor_b32 v6, 64, v5
""")
def breadsF(n, dst):
    for db in range(2):
        for u in range(2):
            a(f"ds_read_b64_tr_b16 {vr(dst+4*db+2*u,2)}, v{5+db} offset:{L_F2 + (n % 11)*2048 + u*512}", ("b", n))
a.wait(vm=("w", 0))
for n in range(11):
    breadsF(n, 128 + 8*n)
a("s_waitcnt lgkmcnt(0)")
stamp(6)
for i in range(22, 44): w2dma(i)
hid_voffs()
a(f"""
s_mov_b32 s{sT[6]}, 0x000000ff
s_cmp_eq_u32 s{sG}, 1
s_cselect_b32 s{sT[6]}, 0x0000ffc0, s{sT[6]}
s_cmp_eq_u32 s{sG}, 2
s_cselect_b32 s{sT[6]}, 0x003fc000, s{sT[6]}
s_cmp_eq_u32 s{sG}, 3
s_cselect_b32 s{sT[6]}, 0xffc00000, s{sT[6]}
""")
flag_poll(0)
stamp(7)
a(f"""
s_mul_i32 s{sT[4]}, s{sRB}, {2*KS*1024}
s_mul_i32 s{sT[0]}, s{sG}, {22*1024}
s_add_u32 s{sT[4]}, s{sT[4]}, s{sT[0]}
s_add_u32 s{sT[4]}, s{sT[4]}, {WS_HID}
s_cmp_eq_u32 s{sG}, 3
s_cselect_b32 s{sT[0]}, 0x7ff00000, 0
v_add_u32 v8, s{sT[0]}, v2
v_add_u32 v9, s{sT[0]}, v3
""")
def aoffF(n):
    if n % 4 == 0 and n > 0: a(f"s_add_u32 s{sT[4]}, s{sT[4]}, 4096")
    return sT[4], (n % 4)*1024, (8 if n >= 20 else 2)
p2_loop(22, 11, 128, breadsF, aoffF)
stamp(8)
resid_load()
dump(sT[8])
a("s_branch L_final")
stF = a.fork()

a.restore(st0)
a.raw(".p2align 6")
a.label("L_S")
vBA, vDB, vDW = 6, 10, 12
a(f"""
v_lshrrev_b32 v{vTmp}, 3, v{vL}
v_lshl_add_u32 v{vDB}, v{vTmp}, 10, v27
v_xor_b32 v{vDB+1}, 64, v{vDB}
v_add_u32 v{vDB+1}, 0x1c00, v{vDB+1}
v_lshrrev_b32 v{vTmp}, 2, v{vL}
v_mul_u32_u24 v{vTmp}, 2752, v{vTmp}
v_and_b32 v{vTmp2}, 3, v{vL}
v_lshl_add_u32 v{vDW}, v{vTmp2}, 4, v{vTmp}
s_lshl_b32 s{sT[7]}, s{sJ}, 15
s_and_b32 s{sT[0]}, s{sG}, 1
s_lshl_b32 s{sT[0]}, s{sT[0]}, 14
s_add_u32 s{sT[7]}, s{sT[7]}, s{sT[0]}
s_mul_i32 s{sT[6]}, s{sG}, {16*2752}
s_lshl_b32 s{sT[0]}, s{sSB}, 6
s_add_u32 s{sT[6]}, s{sT[6]}, s{sT[0]}
s_lshl_b32 s{sT[8]}, s{sG}, 11
s_mul_i32 s{sT[2]}, s{sG}, 3072
""")
def dmaS(c):
    def bw(i):
        def f():
            a(f"s_add_u32 m0, s{sT[8]}, {L_BW + (c&3)*8192}\ns_add_u32 s{sT[9]}, s{sT[7]}, {c*128}")
            a(f"buffer_load_dwordx4 v{vDB+i}, {srd(sB)}, s{sT[9]} offen offset:{1024*i} lds", ("c", c))
        return f
    def w1(b):
        def f():
            a(f"s_add_u32 m0, s{sT[2]}, {L_W1 + (c&3)*12288 + 960*b}\ns_add_u32 s{sT[9]}, s{sT[6]}, {c*64*2752}")
            a(f"buffer_load_dwordx4 v{vDW}, {srd(sW1)}, s{sT[9]} offen offset:{64*b} lds", ("c", c))
        return f
    return [w1(0), w1(1), w1(2), bw(0), bw(1)]
for f in dmaS(0): f()
a(f"s_lshl_b32 s{sT[0]}, s{sJ}, 6\nv_lshl_add_u32 v{vTmp}, v{vI}, 1, s{sT[0]}")
a(f"global_load_ushort v150, v{vTmp}, s[10:11]", "par")
a(f"global_load_ushort v151, v{vTmp}, s[12:13]", "par")
a(f"global_load_ushort v152, v{vTmp}, s[22:23]", "par")
a("s_barrier")
for f in dmaS(1): f()
a(f"s_lshl_b32 s{sT[0]}, s{sG}, 12\ns_sub_u32 s{sT[0]}, {L_BW}, s{sT[0]}")
for s in range(4): a(f"v_add_u32 v{vBA+s}, s{sT[0]}, v{vXA+s}")
for r in range(14, 20): a(f"v_mov_b32 v{r}, 0")
stat_off()
a.wait(vm="row")
stats()
a("s_barrier")
for f in dmaS(2): f()
vLam, vK, vL16, vL128, vL256, vPW = 112, 114, 116, 118, 120, 122
a.wait(vm="par")
a(f"""
v_lshlrev_b32 v150, 16, v150
v_lshlrev_b32 v151, 16, v151
v_lshlrev_b32 v152, 16, v152
v_mul_f32 v152, 0x3fb8aa3b, v152
v_exp_f32 v152, v152
v_cvt_pk_bf16_f32 v152, v152, v152
v_lshlrev_b32 v152, 16, v152
v_mul_f32 v153, v152, v150
v_mul_f32 v154, v152, v151
v_mul_f32 v153, 0x3fb8aa3b, v153
v_exp_f32 v153, v153
v_mul_f32 v154, 0.15915494, v154
v_rndne_f32 v155, v154
v_sub_f32 v154, v154, v155
v_cos_f32 v155, v154
v_sin_f32 v156, v154
v_mul_f32 v{vLam}, v153, v155
v_mul_f32 v{vLam+1}, v153, v156
v_add_f32 v153, -1.0, v{vLam}
v_mul_f32 v154, v150, v150
v_fmac_f32 v154, v151, v151
v_rcp_f32 v154, v154
v_mul_f32 v155, v153, v150
v_fmac_f32 v155, v{vLam+1}, v151
v_mul_f32 v156, v{vLam+1}, v150
v_fma_f32 v156, -v153, v151, v156
v_add_f32 v154, v154, v154
v_mul_f32 v{vK}, v155, v154
v_mul_f32 v{vK+1}, v156, v154
""")
cmul(150, vLam, vLam); cmul(152, 150, 150); cmul(150, 152, 152); cmul(vL16, 150, 150)
cmul(150, vL16, vL16)
cmul(152, 150, 150)
cmul(vL128, 152, 152); cmul(vL256, vL128, vL128)
a(f"""
v_cmp_gt_u32 vcc, 32, v{vL}
v_cndmask_b32 v154, v{vL16}, 1.0, vcc
v_cndmask_b32 v155, v{vL16+1}, 0, vcc
s_bitcmp1_b32 s{sG}, 0
s_cselect_b64 vcc, -1, 0
v_cndmask_b32 v150, 1.0, v150, vcc
v_cndmask_b32 v151, 0, v151, vcc
s_bitcmp1_b32 s{sG}, 1
s_cselect_b64 vcc, -1, 0
v_cndmask_b32 v152, 1.0, v152, vcc
v_cndmask_b32 v153, 0, v153, vcc
""")
cmul(156, 154, 150); cmul(vPW, 156, 152)
stamp(2)
wsetS = lambda n: (40, 52, 64, 52)[n & 3]
def readsS(n):
    c, s = n >> 2, n & 3
    a(f"ds_read_b128 {vr(32+4*(n&1),4)}, v{vXA+s} offset:{(c&3)*16384}", ("r", n))
    for b in range(2):
        a(f"ds_read_b128 {vr(wsetS(n)+4*b,4)}, v{vBA+s} offset:{(c&3)*8192+b*4096}", ("r", n))
def mfmaS(n, b):
    acc = vr(ACC1+16*b, 16)
    a(f"v_mfma_f32_32x32x16_bf16 {acc}, {vr(32+4*(n&1),4)}, {vr(wsetS(n)+4*b,4)}, {'0' if n == 0 else acc}")
p1_loop(2, readsS, mfmaS, dmaS, wsetS, 14, 17)
stamp(3)
cs_exchange(2, 1, 14, 17, 52)
a(f"""
v_lshrrev_b32 v4, 3, v{vL}
v_lshl_add_u32 v4, v4, 10, v27
v_xor_b32 v5, 64, v4
s_lshl_b32 s{sT[7]}, s{sNB}, 16
s_lshl_b32 s{sT[0]}, s{sG}, 8
s_add_u32 s{sT[7]}, s{sT[7]}, s{sT[0]}
s_lshl_b32 s{sT[8]}, s{sG}, 14
s_add_u32 s{sT[8]}, s{sT[8]}, {L_S2}
""")
def cdma(kh, part, i):
    a(f"s_add_u32 m0, s{sT[8]}, {part*8192 + i*1024}\ns_add_u32 s{sT[9]}, s{sT[7]}, {i*8192 + kh*128}")
    a(f"buffer_load_dwordx4 v{4+(i&1)}, {srd(sCI if part else sCR)}, s{sT[9]} offen lds", ("w", kh))
cq = [(0, p, i) for p in range(2) for i in range(8)]
for _ in range(2): cdma(*cq.pop(0))
stat_check()
xaug(48)
a(f"""
v_lshlrev_b32 v60, 16, v{vST}
v_rcp_f32 v60, v60
s_lshl_b32 s{sT[0]}, s{sG}, 7
s_add_u32 s{sT[0]}, s{sT[0]}, {L_RB}
v_lshl_add_u32 v61, v{vTI}, 2, s{sT[0]}
v_lshrrev_b32 v62, 5, v{vL}
v_lshl_add_u32 v62, v62, 6, s{sT[0]}
""")
a("ds_write_b32 v61, v60", "rw")
cs_finish(2, 52)
for b in range(2):
    acc = vr(ACC1+16*b, 16)
    a(f"v_mfma_f32_32x32x16_bf16 {acc}, v[48:51], {vr(52+4*b,4)}, {acc}")
a.wait(lg="rw")
vR, vU = 32, 192
for q in range(4): a(f"ds_read_b128 {vr(vR+4*q,4)}, v62 offset:{16*q}", "rr")
for _ in range(2): cdma(*cq.pop(0))
for t in range(16):
    e, o = t & ~1, t & 1
    a(f"v_pk_mul_f32 {vr(vU+2*t,2)}, {vr(vK,2)}, {vr(ACC1+e,2)} op_sel:[0,{o}] op_sel_hi:[1,{o}]")
    a(f"v_pk_fma_f32 {vr(vU+2*t,2)}, {vr(vK,2)}, {vr(ACC1+16+e,2)}, {vr(vU+2*t,2)} op_sel:[1,{o},0] op_sel_hi:[0,{o},1] neg_lo:[1,0,0]")
a.wait(lg="rr")
for t in range(16):
    e, o = t & ~1, t & 1
    a(f"v_pk_mul_f32 {vr(vU+2*t,2)}, {vr(vU+2*t,2)}, {vr(vR+e,2)} op_sel:[0,{o}] op_sel_hi:[1,{o}]")
for _ in range(2): cdma(*cq.pop(0))
cur = vU
for t in range(1, 16):
    d = 48 + 2*(t & 1)
    cfma(d, vLam, cur, vU + 2*t, 52)
    cur = d
a(f"""
v_and_b32 v54, 31, v{vL}
v_lshlrev_b32 v54, 3, v54
v_add_u32 v54, {L_SEG}, v54
s_lshl_b32 s{sT[0]}, s{sG}, 9
v_lshl_add_u32 v55, v{vL}, 3, s{sT[0]}
v_add_u32 v55, {L_SEG}, v55
ds_write_b64 v55, {vr(cur,2)}
s_waitcnt lgkmcnt(0)
s_barrier
""")
for sgi in range(8): a(f"ds_read_b64 {vr(56+2*sgi,2)}, v54 offset:{256*sgi}", "seg")
a(f"s_lshl_b32 s{sT[0]}, s{sG}, 1\nv_lshrrev_b32 v53, 5, v{vL}\nv_add_u32 v53, s{sT[0]}, v53\nv_mov_b32 v124, 0\nv_mov_b32 v125, 0")
a.wait(lg="seg")
cur = 56
for jx in range(1, 9):
    if jx < 8:
        a(f"v_cmp_eq_u32 vcc, {jx}, v53\nv_cndmask_b32 v124, v124, v{cur}, vcc\nv_cndmask_b32 v125, v125, v{cur+1}, vcc")
        d = 48 + 2*(jx & 1) if jx < 7 else 72
        cfma(d, vL16, cur, 56 + 2*jx, 56 + 2*jx)
        cur = d
lbl = newlabel("noe")
a(f"""
v_mov_b32 v74, s{sTAG}
v_mov_b32 v75, s{sTAG}
s_lshl_b32 s{sT[0]}, s{sMB}, 13
s_lshl_b32 s{sT[1]}, s{sJ}, 9
s_add_u32 s{sT[4]}, s{sT[0]}, s{sT[1]}
s_add_u32 s{sT[0]}, s{sT[4]}, {WS_EGR}
s_cmp_eq_u32 s{sG}, 0
s_cselect_b32 s{sT[1]}, 0, 0x7ff00000
v_add_u32 v76, s{sT[1]}, v31
s_mov_b32 exec_hi, 0
""")
a(f"buffer_store_dwordx4 v[72:75], v76, {srd(sWS)}, s{sT[0]} offen sc1", "e_st")
a("s_mov_b64 exec, -1")
stamp(4)
while cq: cdma(*cq.pop(0))
a(f"""
v_lshrrev_b32 v20, 5, v{vL}
v_bfe_u32 v21, v{vL}, 1, 3
v_xor_b32 v20, v20, v21
v_lshlrev_b32 v20, 4, v20
v_and_b32 v21, 31, v{vL}
v_lshl_add_u32 v20, v21, 7, v20
v_add_u32 v6, s{sT[8]}, v20
v_xor_b32 v7, 32, v6
v_xor_b32 v8, 64, v6
v_xor_b32 v9, 0x60, v6
""")
def breadsS(n, dst):
    jl, part, half = (n >> 2) & 1, (n >> 1) & 1, n & 1
    for db in range(2):
        a(f"ds_read_b128 {vr(dst+4*db,4)}, v{6+2*jl+half} offset:{part*8192+db*4096}", ("b", n))
a.wait(vm=("w", 0))
for n in range(8): breadsS(n, 128 + 8*n)
a("s_waitcnt lgkmcnt(0)")
cq = [(1, p, i) for p in range(2) for i in range(8)]
for _ in range(12): cdma(*cq.pop(0))
stamp(5)
a(f"""
v_lshrrev_b32 v21, 5, v{vL}
v_sub_u32 v21, s{sMB}, v21
v_subrev_u32 v21, 1, v21
v_and_b32 v20, 31, v{vL}
v_lshlrev_b32 v20, 4, v20
v_lshl_add_u32 v20, v21, 13, v20
s_lshl_b32 s{sT[1]}, s{sJ}, 9
s_add_u32 s{sT[0]}, s{sT[1]}, {WS_EGR}
s_mov_b32 s{sT[3]}, {SPIN}
v_mov_b32 v22, 0x7ff00000
""")
for i in range(8):
    a(f"v_subrev_u32 v{10+i}, {i*16384}, v20")
    a(f"v_cmp_le_i32 vcc, {2*i}, v21\nv_cndmask_b32 v{10+i}, v22, v{10+i}, vcc")
top, done = newlabel("lb"), newlabel("lbd")
a.label(top)
for i in range(8):
    a(f"buffer_load_dwordx4 {vr(48+4*i,4)}, v{10+i}, {srd(sWS)}, s{sT[0]} offen sc1")
a("s_waitcnt vmcnt(0)\ns_mov_b64 s[32:33], 0")
for i in range(8):
    a(f"v_cmp_ne_u32 vcc, s{sTAG}, v{48+4*i+2}\nv_cmp_le_i32 s[8:9], {2*i}, v21\ns_and_b64 vcc, vcc, s[8:9]\ns_or_b64 s[32:33], s[32:33], vcc")
a(f"s_cbranch_scc0 {done}")
a(f"s_sleep 2\ns_sub_u32 s{sT[3]}, s{sT[3]}, 1\ns_cmp_lg_u32 s{sT[3]}, 0\ns_cbranch_scc1 {top}")
a.label(done)
stamp(6)
cur = 48 + 4*7
for i in range(6, -1, -1):
    cfma(48 + 4*i, vL256, cur, 48 + 4*i, 48 + 4*i)
    cur = 48 + 4*i
a("v_mov_b32 v52, v48\nv_mov_b32 v53, v49")
a("v_permlane32_swap_b32 v48, v52\nv_permlane32_swap_b32 v49, v53")
cfma(56, vL128, 52, 48, 56)
cfma(58, vPW, 56, 124, 58)
cur = 58
for t in range(16):
    cfma(vU + 2*t, vLam, cur, vU + 2*t, vU + 2*t)
    cur = vU + 2*t
for m in range(8):
    a(f"v_cvt_pk_bf16_f32 v{32+m}, v{vU+4*m}, v{vU+4*m+2}")
    a(f"v_cvt_pk_bf16_f32 v{40+m}, -v{vU+4*m+1}, -v{vU+4*m+3}")
SCR = 12288
a(f"""
v_and_b32 v20, 31, v{vL}
v_lshrrev_b32 v21, 5, v{vL}
v_lshlrev_b32 v20, 6, v20
v_lshl_add_u32 v20, v21, 5, v20
v_add_u32 v20, s{sT[8]}, v20
ds_write_b128 v20, v[32:35] offset:{SCR}
ds_write_b128 v20, v[36:39] offset:{SCR+16}
ds_write_b128 v20, v[40:43] offset:{SCR+2048}
ds_write_b128 v20, v[44:47] offset:{SCR+2064}
v_bfe_u32 v22, v{vL}, 2, 2
v_lshl_add_u32 v21, v21, 3, v22
v_lshlrev_b32 v21, 6, v21
v_and_b32 v22, 1, v{vL}
v_lshl_add_u32 v21, v22, 5, v21
v_bfe_u32 v22, v{vL}, 4, 1
v_lshl_add_u32 v21, v22, 4, v21
v_bfe_u32 v22, v{vL}, 1, 1
v_lshl_add_u32 v21, v22, 3, v21
v_add_u32 v21, s{sT[8]}, v21
s_lshl_b32 s{sT[0]}, s{sMB}, 2
s_add_u32 s{sT[0]}, s{sT[0]}, s{sG}
s_mul_i32 s{sT[0]}, s{sT[0]}, {KS*1024}
s_lshl_b32 s{sT[1]}, s{sJ}, 12
s_add_u32 s{sT[0]}, s{sT[0]}, s{sT[1]}
s_add_u32 s{sT[4]}, s{sT[0]}, {WS_HID + 86*1024}
s_waitcnt lgkmcnt(0)
""")
for f in range(4):
    for u in range(2):
        a(f"ds_read_b64_tr_b16 {vr(48+4*f+2*u,2)}, v21 offset:{SCR + f*1024 + u*256}", ("t", f))
for f in range(4):
    a.wait(lg=("t", f))
    a(f"buffer_store_dwordx4 {vr(48+4*f,4)}, v31, {srd(sWS)}, s{sT[4]} offen offset:{f*1024} sc1", "hid_st")
stamp(7)
while cq: cdma(*cq.pop(0))
flag_store(1)
stamp(8)
hid_voffs()
a(f"s_lshl_b32 s{sT[0]}, s{sG}, 3\ns_lshl_b32 s{sT[6]}, 0xff, s{sT[0]}")
flag_poll(1)
stamp(9)
a(f"""
s_mul_i32 s{sT[4]}, s{sRB}, {2*KS*1024}
s_lshl_b32 s{sT[0]}, s{sG}, 14
s_add_u32 s{sT[4]}, s{sT[4]}, s{sT[0]}
s_add_u32 s{sT[4]}, s{sT[4]}, {WS_HID + 86*1024}
""")
def aoffS(n):
    if n % 4 == 0 and n > 0: a(f"s_add_u32 s{sT[4]}, s{sT[4]}, 4096")
    return sT[4], (n % 4)*1024, 2
p2_loop(16, 8, 128, breadsS, aoffS)
stamp(10)
resid_load()
dump(sT[8])

a.label("L_final")
a(f"""
v_and_b32 v8, 7, v232
v_xor_b32 v8, v8, v233
v_lshlrev_b32 v8, 4, v8
v_lshl_add_u32 v8, v232, 8, v8
v_add_u32 v9, {2*F2SZ}, v8
v_add_u32 v10, {L_S2}, v8
v_lshlrev_b32 v11, 11, v236
v_lshl_add_u32 v11, v233, 4, v11
s_lshl_b32 s{sT[0]}, s{sRB}, 17
s_lshl_b32 s{sT[1]}, s{sNB}, 8
s_add_u32 s{sT[0]}, s{sT[0]}, s{sT[1]}
s_add_u32 s{sT[1]}, s{sT[0]}, 0x10000
s_waitcnt vmcnt(0)
""")
a(f"""
v_lshlrev_b32 v140, 16, v246
v_and_b32 v141, s{sMASK}, v246
v_lshlrev_b32 v142, 16, v247
v_and_b32 v143, s{sMASK}, v247
""")
for tb in range(2):
    x, stt, o = 240 + 2*tb, 244 + tb, 128 + 4*tb
    a(f"""
    v_lshlrev_b32 v{o}, 16, v{x}
    v_and_b32 v{o+1}, s{sMASK}, v{x}
    v_lshlrev_b32 v{o+2}, 16, v{x+1}
    v_and_b32 v{o+3}, s{sMASK}, v{x+1}
    v_and_b32 v144, s{sMASK}, v{stt}
    v_lshlrev_b32 v145, 16, v{stt}
    v_rcp_f32 v145, v145
    """)
    for i in range(4): a(f"v_sub_f32 v{148+i}, v{o+i}, v144")
    def rnd():
        a("v_cvt_pk_bf16_f32 v152, v148, v149\nv_cvt_pk_bf16_f32 v153, v150, v151")
        a(f"v_lshlrev_b32 v148, 16, v152\nv_and_b32 v149, s{sMASK}, v152\nv_lshlrev_b32 v150, 16, v153\nv_and_b32 v151, s{sMASK}, v153")
    rnd()
    for i in range(4): a(f"v_mul_f32 v{148+i}, v{148+i}, v145")
    rnd()
    for i in range(4): a(f"v_mul_f32 v{148+i}, v{148+i}, v{140+i}")
    rnd()
    for i in range(4): a(f"v_add_f32 v{o+i}, v{o+i}, v{148+i}")
a("s_waitcnt lgkmcnt(0)\ns_barrier")
stamp(11)
for tb in range(2):
    for q in range(8):
        if q < 2: base, off = 8, q*F2SZ
        elif q < 4: base, off = 9, (q-2)*F2SZ
        else: base, off = 10, (q-4)*S2SZ
        a(f"ds_read_b128 {vr(160+32*tb+4*q,4)}, v{base} offset:{off + tb*8192}", ("f", tb, q // 4))
for tb in range(2):
    o = 128 + 4*tb
    for hq in range(2):
        a.wait(lg=("f", tb, hq))
        for q in range(4*hq, 4*hq + 4):
            r = 160 + 32*tb + 4*q
            a(f"v_pk_add_f32 {vr(o,2)}, {vr(o,2)}, {vr(r,2)}\nv_pk_add_f32 {vr(o+2,2)}, {vr(o+2,2)}, {vr(r+2,2)}")
    a(f"buffer_store_dwordx4 {vr(o,4)}, v11, {srd(sOUT)}, s{sT[tb]} offen")
a(f"s_cmp_lg_u32 s2, 0xff\ns_cbranch_scc1 L_noep\ns_cmp_lg_u32 s{sW}, 0\ns_cbranch_scc1 L_noep")
a(f"v_mov_b32 v20, s{sTAG}\nv_mov_b32 v21, 0\ns_mov_b64 exec, 1")
a(f"buffer_store_dword v20, v21, {srd(sWS)}, 0 offen sc1")
a("s_mov_b64 exec, -1")
a.label("L_noep")
if STAMPS:
    a("s_waitcnt vmcnt(0)")
    stamp(12)
    a(f"s_waitcnt lgkmcnt(0)\ns_lshl_b32 s{sT[0]}, s2, 3\ns_add_u32 s{sT[0]}, s{sT[0]}, s{sW}\ns_lshl_b32 s{sT[0]}, s{sT[0]}, 7\ns_add_u32 s{sT[0]}, s{sT[0]}, {WS_STAMP}")
    a("v_mov_b32 v21, 0\ns_mov_b64 exec, 1")
    for i, r in enumerate(STAMP_REGS[:13]):
        a(f"v_mov_b32 v20, s{r}\nbuffer_store_dword v20, v21, {srd(sWS)}, s{sT[0]} offen offset:{4*i}")
if OPT["pad"]:
    a.label("L_pad")
    a(f"s_sleep 4\ns_memrealtime s[8:9]\ns_waitcnt lgkmcnt(0)\ns_sub_u32 s8, s8, s84\ns_cmp_lt_u32 s8, {OPT['pad']}\ns_cbranch_scc1 L_pad")
if OPT["dbg"]:
    a("s_memrealtime s[8:9]\ns_waitcnt lgkmcnt(0)")
    mksrd(sX, 34, 256)
    a("s_mov_b64 exec, 1\nv_mov_b32 v21, 0\nv_mov_b32 v20, s8")
    a(f"buffer_atomic_umax v20, v21, {srd(sX)}, 0 offen")
    a("s_not_b32 s9, s84\nv_mov_b32 v22, s9")
    a(f"buffer_atomic_umax v22, v21, {srd(sX)}, 0 offen offset:4")
    a("v_mov_b32 v23, s84")
    a(f"buffer_atomic_umax v23, v21, {srd(sX)}, 0 offen offset:8")
    a(f"s_cmp_lg_u32 s2, 0x85\ns_cbranch_scc1 L_end\ns_cmp_lg_u32 s{sW}, 5\ns_cbranch_scc1 L_end")
    for i, r in enumerate(STAMP_REGS[2:13]):
        a(f"s_sub_u32 s9, s{r}, s86\nv_mov_b32 v20, s9\nbuffer_store_dword v20, v21, {srd(sX)}, 0 offen offset:{16+4*i}")
    a(f"s_sub_u32 s9, s8, s84\nv_mov_b32 v20, s9\nbuffer_store_dword v20, v21, {srd(sX)}, 0 offen offset:12")
a.label("L_end")
a("s_endpgm")
a.raw(f""".section .rodata,"a"
.p2align 6
.amdhsa_kernel {NAME}_kernel
  .amdhsa_next_free_vgpr 256
  .amdhsa_next_free_sgpr 102
  .amdhsa_accum_offset 256
  .amdhsa_group_segment_fixed_size 0
  .amdhsa_kernarg_size 120
  .amdhsa_user_sgpr_count 2
  .amdhsa_user_sgpr_kernarg_segment_ptr 1
  .amdhsa_system_sgpr_workgroup_id_x 1
.end_amdhsa_kernel""")
open(sys.argv[1], "w").write(a.text())
print("lines", len(a.lines), "nops", a.nnop, file=sys.stderr)
```

```python
import sys
from asmlib import Asm
NAME = "parallel_sum__ssm_conv_s5__dense_activation_silu__prompt"
OPT = dict(stamps=0, pad=0,
           r_mb=0, r_j=0, r_x0=0, r_x1=0,
           r_sh=0,
           rot2=1,
           tw2=1, ttlb=1, tcode=1,
           wF=3, n1S=6, DA=6, statn=20, fe=2, prio=0, asc1=1, rot2a=1, psleep=0, fsh=7, vpoll=0)
for a_ in sys.argv[2:]:
    k, v = a_.split("="); assert k in OPT, k; OPT[k] = int(v)
STAMPS = OPT["stamps"]

WS_EPOCH = 0
WS_FLAG  = 0xc0000
FSH = OPT['fsh']; FSTR = 512 << FSH
WS_STAT  = 0x4000
WS_EGR   = 0x10000
WS_STAMP = 0x40000
WS_HID   = 0x100000
KS = 152
KF = 88
WS_SIZE  = WS_HID + 64*KS*1024
NST = 3
L_X, L_BW, L_W1 = 0, 49152, 73728
L_FE, L_SE = 110592, 126976
L_CS = 159744
L_FL, FLSZ = 0, 18432
L_SL, SLSZ = 73728, 8192
L_RB  = 106496
L_SEG = L_RB + 512
LDS_BYTES = 163840
sX, sB, sW1, sW2, sC0, sC1, sOUT, sWS = 40, 44, 48, 52, 56, 60, 64, 68
sW, sG, sMB, sJ, sRB, sNB, sTAG, sSB = 72, 73, 74, 75, 76, 77, 78, 98
sMASK, sROT, sR2F, sR2S = 38, 99, 100, 101
sT = [80, 81, 82, 83, 3, 4, 5, 6, 7, 39]
sE, sLt = 34, 35
srd = lambda r: f"s[{r}:{r+3}]"
vr = lambda a, n: f"v[{a}:{a+n-1}]"

a = Asm()
stamp_names = {"F": [], "S": []}
cur_stream = ["F"]
stamp_n = {"F": 0, "S": 0}
def stamp(name, both=False):
    if not STAMPS: return
    st = cur_stream[0]
    k = stamp_n[st]
    if both:
        k = max(stamp_n.values())
        for s_ in stamp_n:
            stamp_names[s_] += ["-"] * (k - stamp_n[s_]) + [name]; stamp_n[s_] = k + 1
        a(f"s_memtime s[88:89]\ns_waitcnt lgkmcnt(0)\nv_writelane_b32 v255, s88, {k+2}")
        return
    stamp_names[st].append(name); stamp_n[st] = k + 1
    r = 90 + 2*(k % 4)
    if k >= 3: a(f"v_writelane_b32 v255, s{90 + 2*((k-3) % 4)}, {k-3+2}")
    a(f"s_memtime s[{r}:{r+1}]")
def stamp_flush():
    if not STAMPS: return
    st = cur_stream[0]; k = stamp_n[st]
    a("s_waitcnt lgkmcnt(0)")
    for i in range(max(0, k-3), k): a(f"v_writelane_b32 v255, s{90 + 2*(i % 4)}, {i+2}")

def mksrd(r, p, size):
    a(f"s_mov_b32 s{r}, s{p}\ns_mov_b32 s{r+1}, s{p+1}\ns_mov_b32 s{r+2}, {hex(size)}\ns_mov_b32 s{r+3}, 0x20000")
def cmul(d, x, y):
    a(f"v_pk_mul_f32 {vr(d,2)}, {vr(x,2)}, {vr(y,2)} op_sel:[0,0] op_sel_hi:[0,1]")
    a(f"v_pk_fma_f32 {vr(d,2)}, {vr(x,2)}, {vr(y,2)}, {vr(d,2)} op_sel:[1,1,0] op_sel_hi:[1,0,1] neg_lo:[1,0,0]")
def cfma(d, x, y, z, t):
    a(f"v_pk_fma_f32 {vr(t,2)}, {vr(x,2)}, {vr(y,2)}, {vr(z,2)} op_sel:[0,0,0] op_sel_hi:[0,1,1]")
    a(f"v_pk_fma_f32 {vr(d,2)}, {vr(x,2)}, {vr(y,2)}, {vr(t,2)} op_sel:[1,1,0] op_sel_hi:[1,0,1] neg_lo:[1,0,0]")
def dpp_sum(v):
    for m in ("row_shr:1","row_shr:2","row_shr:4","row_shr:8"):
        a(f"v_add_f32_dpp v{v}, v{v}, v{v} {m} row_mask:0xf bank_mask:0xf bound_ctrl:0")
    a(f"v_add_f32_dpp v{v}, v{v}, v{v} row_bcast:15 row_mask:0xa bank_mask:0xf")
    a(f"v_add_f32_dpp v{v}, v{v}, v{v} row_bcast:31 row_mask:0xc bank_mask:0xf")
uid = [0]
def newlabel(p):
    uid[0] += 1; return f"L_{p}_{uid[0]}"
SPIN = 0x20000

hdr = open("cdna_kernels/%s.s.ref" % NAME).read().split("; Override")[0]
a.raw(hdr.rstrip())
a.raw(f"; @launch grid=(256,1,1) block=(512,1,1) lds={LDS_BYTES}")
a.raw('.amdgcn_target "amdgcn-amd-amdhsa--gfx950"\n.text\n.globl %s_kernel\n.p2align 8\n.type %s_kernel,@function' % (NAME, NAME))
a.label(NAME + "_kernel")
a("s_cmp_ge_u32 s2, 0x100\ns_cbranch_scc1 L_end")
a("s_load_dwordx16 s[8:23], s[0:1], 0\ns_load_dwordx8 s[24:31], s[0:1], 64\ns_load_dwordx2 s[32:33], s[0:1], 96\ns_load_dwordx2 s[36:37], s[0:1], 112")
if STAMPS or OPT["pad"]:
    a("s_memrealtime s[84:85]\ns_memtime s[86:87]")
vL = 1
vH, vI, vF, vTmp, vTmp2, vTmp3, vTI = 20, 21, 22, 23, 24, 25, 26
vXA, vST, vSTA = 2, 28, 30
vROW = 128
a(f"""
v_lshrrev_b32 v2, 6, v0
v_and_b32 v1, 63, v0
v_readfirstlane_b32 s{sW}, v2
s_and_b32 s{sT[0]}, s2, 7
s_lshr_b32 s{sT[1]}, s2, 3
s_and_b32 s{sT[3]}, s{sT[0]}, 1
s_lshl_b32 s{sMB}, s{sT[3]}, 3
s_and_b32 s{sNB}, s{sT[1]}, 7
s_add_u32 s{sMB}, s{sMB}, s{sNB}
s_lshr_b32 s{sT[4]}, s{sT[0]}, 1
s_lshl_b32 s{sJ}, s{sT[4]}, 2
s_lshr_b32 s{sT[2]}, s{sT[1]}, 3
s_add_u32 s{sJ}, s{sJ}, s{sT[2]}
s_lshl_b32 s{sRB}, s{sT[0]}, 2
s_add_u32 s{sRB}, s{sRB}, s{sT[2]}
""")
a(f"s_mul_i32 s{sROT}, s{sNB}, {OPT['r_mb']}")
for reg, key in ((sT[2], "r_j"), (sT[3], "r_x0"), (sT[4], "r_x1")):
    if OPT[key]: a(f"s_mul_i32 s{sT[5]}, s{reg}, {OPT[key]}\ns_add_u32 s{sROT}, s{sROT}, s{sT[5]}")
if OPT["r_sh"]: a(f"s_lshr_b32 s{sROT}, s{sROT}, {OPT['r_sh']}\ns_lshl_b32 s{sROT}, s{sROT}, {OPT['r_sh']}")
a(f"""
s_and_b32 s{sROT}, s{sROT}, 7
s_mul_i32 s{sSB}, s{sJ}, 3
s_lshl_b32 s{sT[5]}, s{sJ}, 1
s_add_u32 s{sT[5]}, s{sT[5]}, 11
s_min_u32 s{sSB}, s{sSB}, s{sT[5]}
s_and_b32 s{sG}, s{sW}, 3
v_lshrrev_b32 v{vH}, 5, v{vL}
v_lshlrev_b32 v31, 4, v{vL}
v_and_b32 v{vTmp2}, 7, v{vL}
v_lshrrev_b32 v{vTmp3}, 4, v{vL}
v_xor_b32 v27, v{vTmp2}, v{vTmp3}
v_lshlrev_b32 v27, 4, v27
s_lshl_b32 s{sT[0]}, s{sMB}, 7
s_lshl_b32 s{sT[1]}, s{sJ}, 3
s_add_u32 s{sT[0]}, s{sT[0]}, s{sT[1]}
s_add_u32 s{sT[4]}, s{sT[0]}, s{sW}
s_lshl_b32 s{sT[1]}, s{sT[4]}, 10
s_mov_b32 s{sX+2}, 0x200000
s_mov_b32 s{sX+3}, 0x20000
s_cmp_ge_u32 s{sW}, 4
s_cbranch_scc1 L_Spro
""")
st0 = a.fork()

def kchunk(c, dst, base, mul):
    a(f"s_add_u32 s{dst}, s{sROT}, {c}\ns_and_b32 s{dst}, s{dst}, 7\ns_mul_i32 s{dst}, s{dst}, {mul}\ns_add_u32 s{dst}, s{dst}, s{base}")

vWA, vDX = 6, 10
a(f"""
v_bfe_u32 v{vTmp}, v{vL}, 3, 2
v_lshl_add_u32 v{vTmp}, v{vH}, 4, v{vTmp}
v_lshl_add_u32 v{vDX}, v{vTmp}, 10, v27
v_add_u32 v{vDX+2}, 0x1800, v{vDX}
v_xor_b32 v{vDX+1}, 64, v{vDX}
v_add_u32 v{vDX+1}, 0xc00, v{vDX+1}
v_add_u32 v{vDX+3}, 0x1800, v{vDX+1}
s_lshl_b32 s{sT[7]}, s{sMB}, 17
s_lshl_b32 s{sT[0]}, s{sG}, 15
s_add_u32 s{sT[7]}, s{sT[7]}, s{sT[0]}
s_lshl_b32 s{sT[8]}, s{sG}, 12
""")
def dmaF(c):
    def one(i):
        def f():
            if i == 0:
                kchunk(c, sT[9], sT[7], 128)
            a(f"s_add_u32 m0, s{sT[8]}, {L_X + (c % NST)*16384}")
            a(f"buffer_load_dwordx4 v{vDX+i}, {srd(sX)}, s{sT[9]} offen offset:{1024*i} lds", ("c", c))
        return f
    return [one(i) for i in range(4)]
a(f"s_waitcnt lgkmcnt(0)\ns_mov_b32 s{sX}, s8\ns_mov_b32 s{sX+1}, s9")
stamp("kernarg")
a(f"buffer_load_dwordx4 {vr(vROW,4)}, v31, {srd(sX)}, s{sT[1]} offen", "row")
for f in dmaF(0): f()
a("s_branch L_common")
stF0 = a.fork()

a.restore(st0); cur_stream[0] = "S"
a.label("L_Spro")
vBA, vDB, vDW = 6, 10, 12
a(f"""
v_lshrrev_b32 v{vTmp}, 3, v{vL}
v_lshl_add_u32 v{vDB}, v{vTmp}, 10, v27
v_xor_b32 v{vDB+1}, 64, v{vDB}
v_add_u32 v{vDB+1}, 0x1c00, v{vDB+1}
v_lshrrev_b32 v{vTmp}, 2, v{vL}
v_mul_u32_u24 v{vTmp}, 2752, v{vTmp}
v_and_b32 v{vTmp2}, 3, v{vL}
v_lshl_add_u32 v{vDW}, v{vTmp2}, 4, v{vTmp}
s_lshl_b32 s{sT[7]}, s{sJ}, 15
s_and_b32 s{sT[0]}, s{sG}, 1
s_lshl_b32 s{sT[0]}, s{sT[0]}, 14
s_add_u32 s{sT[7]}, s{sT[7]}, s{sT[0]}
s_mul_i32 s{sT[6]}, s{sG}, {16*2752}
s_lshl_b32 s{sT[0]}, s{sSB}, 6
s_add_u32 s{sT[6]}, s{sT[6]}, s{sT[0]}
s_lshl_b32 s{sT[8]}, s{sG}, 11
s_mul_i32 s{sT[2]}, s{sG}, 3072
s_mov_b32 s{sB+2}, 0x80000
s_mov_b32 s{sB+3}, 0x20000
s_mov_b32 s{sW1+2}, {512*1376*2}
s_mov_b32 s{sW1+3}, 0x20000
""")
def dmaS(c):
    def bw(i):
        def f():
            if i == 0: kchunk(c, sT[9], sT[7], 128)
            a(f"s_add_u32 m0, s{sT[8]}, {L_BW + (c % NST)*8192}")
            a(f"buffer_load_dwordx4 v{vDB+i}, {srd(sB)}, s{sT[9]} offen offset:{1024*i} lds", ("c", c))
        return f
    def w1(b):
        def f():
            if b == 0: kchunk(c, sT[9], sT[6], 64*2752)
            a(f"s_add_u32 m0, s{sT[2]}, {L_W1 + (c % NST)*12288 + 960*b}")
            a(f"buffer_load_dwordx4 v{vDW}, {srd(sW1)}, s{sT[9]} offen offset:{64*b} lds", ("c", c))
        return f
    return [w1(0), w1(1), w1(2), bw(0), bw(1)]
a(f"""
s_cmp_ge_u32 s{sG}, 2
s_waitcnt lgkmcnt(0)
s_cselect_b32 s{sB}, s16, s14
s_cselect_b32 s{sB+1}, s17, s15
s_mov_b32 s{sW1}, s28
s_mov_b32 s{sW1+1}, s29
s_mov_b32 s{sX}, s8
s_mov_b32 s{sX+1}, s9
""")
stamp("kernarg")
a(f"buffer_load_dwordx4 {vr(vROW,4)}, v31, {srd(sX)}, s{sT[1]} offen", "row")
for f in dmaS(0): f()
stS0 = a.fork()

a.label("L_common")
a.vm = []
a(f"s_load_dword s{sTAG}, s[36:37], {WS_EPOCH}")
if OPT["tcode"]:
    a("s_getpc_b64 s[0:1]")
    a.raw("L_pcref:")
    a(f"""
    s_and_b32 s{sT[0]}, s2, 0xf8
    s_add_u32 s{sT[0]}, s{sT[0]}, s{sW}
    s_lshl_b32 s{sT[0]}, s{sT[0]}, 7
    s_min_u32 s{sT[0]}, s{sT[0]}, L_end-L_pcref
    v_mov_b32 v{vTmp}, s{sT[0]}
    s_mov_b64 exec, 1
    """)
    a(f"global_load_dword v147, v{vTmp}, s[0:1]", "touch")
    a("s_mov_b64 exec, -1")
mksrd(sW2, 30, 512*1376*2)
mksrd(sOUT, 32, 0x400000)
mksrd(sWS, 36, WS_SIZE)
a(f"""
s_and_b32 s{sT[0]}, s{sRB}, 3
s_lshl_b32 s{sT[0]}, s{sT[0]}, 1
s_mul_i32 s{sT[1]}, s{sNB}, {OPT['rot2a']}
s_add_u32 s{sT[0]}, s{sT[0]}, s{sT[1]}
s_and_b32 s{sT[0]}, s{sT[0]}, 7
s_mul_i32 s{sR2F}, s{sT[0]}, {22*OPT['rot2']}
s_lshr_b32 s{sR2F}, s{sR2F}, 3
""")
a(f"""
s_and_b32 s{sR2S}, s{sT[0]}, 2
s_and_b32 s{sT[1]}, s{sT[0]}, 4
s_lshl_b32 s{sT[1]}, s{sT[1]}, 1
s_or_b32 s{sR2S}, s{sR2S}, s{sT[1]}
s_and_b32 s{sT[1]}, s{sT[0]}, 1
s_lshl_b32 s{sT[1]}, s{sT[1]}, 2
s_or_b32 s{sR2S}, s{sR2S}, s{sT[1]}
s_mul_i32 s{sR2S}, s{sR2S}, {OPT['rot2']}
s_bitcmp1_b32 s{sR2S}, 1
s_cselect_b32 s{sC0}, s20, s18
s_cselect_b32 s{sC0+1}, s21, s19
s_cselect_b32 s{sC1}, s18, s20
s_cselect_b32 s{sC1+1}, s19, s21
s_mov_b32 s{sC0+2}, 0x80000
s_mov_b32 s{sC0+3}, 0x20000
s_mov_b32 s{sC1+2}, 0x80000
s_mov_b32 s{sC1+3}, 0x20000
s_mov_b32 s{sMASK}, 0xffff0000
v_and_b32 v{vI}, 31, v{vL}
v_bfe_u32 v{vF}, v{vL}, 1, 3
s_lshl_b32 s{sT[0]}, s{sG}, 1
v_xor_b32 v{vTmp}, v{vH}, v{vF}
v_xor_b32 v{vTmp}, s{sT[0]}, v{vTmp}
v_lshlrev_b32 v{vTmp}, 4, v{vTmp}
v_lshl_add_u32 v{vTmp}, v{vI}, 7, v{vTmp}
s_lshl_b32 s{sT[0]}, s{sG}, 12
v_add_u32 v{vXA}, s{sT[0]}, v{vTmp}
v_xor_b32 v{vXA+1}, 32, v{vXA}
v_xor_b32 v{vXA+2}, 64, v{vXA}
v_xor_b32 v{vXA+3}, 0x60, v{vXA}
v_bfe_u32 v{vTmp2}, v{vL}, 2, 1
v_bfe_u32 v{vTmp3}, v{vL}, 3, 2
v_and_b32 v{vTI}, 3, v{vL}
v_lshl_add_u32 v{vTI}, v{vTmp2}, 4, v{vTI}
v_lshl_add_u32 v{vTI}, v{vTmp3}, 2, v{vTI}
v_lshlrev_b32 v{vSTA}, 3, v{vTI}
s_lshl_b32 s{sT[5]}, s{sMB}, 10
s_lshl_b32 s{sT[0]}, s{sG}, 8
s_add_u32 s{sT[5]}, s{sT[5]}, s{sT[0]}
s_add_u32 s{sT[5]}, s{sT[5]}, {WS_STAT}
""")
for r in range(14, 20): a(f"v_mov_b32 v{r}, 0")
a("s_barrier")
common_ops = list(a.vm)
a(f"s_cmp_ge_u32 s{sW}, 4\ns_cbranch_scc1 L_S")
stC = a.fork()

def touches(which):
    lab = newlabel("tch")
    if which == "F":
        if OPT["tw2"]:
            a(f"""
            s_lshl_b32 s{sT[0]}, s2, 2
            s_add_u32 s{sT[0]}, s{sT[0]}, s{sG}
            s_mul_i32 s{sT[0]}, s{sT[0]}, {11*128}
            v_lshlrev_b32 v{vTmp}, 7, v{vL}
            s_mov_b64 exec, 0x7ff
            """)
            a(f"buffer_load_dword v148, v{vTmp}, {srd(sW2)}, s{sT[0]} offen", "touch")
            a("s_mov_b64 exec, -1")
        if OPT["ttlb"]:
            a(f"v_lshlrev_b32 v{vTmp}, 20, v{vL}\ns_mov_b64 exec, 0x7ff")
            a(f"buffer_load_dword v149, v{vTmp}, {srd(sWS)}, 0 offen offset:2048 sc1", "touch")
            a("s_mov_b64 exec, 0xf")
            a(f"buffer_load_dword v149, v{vTmp}, {srd(sOUT)}, 0 offen", "touch")
            a("s_mov_b64 exec, -1")
    else:
        if OPT["tw2"]:
            a(f"""
            s_lshl_b32 s{sT[0]}, s2, 2
            s_add_u32 s{sT[0]}, s{sT[0]}, s{sG}
            s_lshl_b32 s{sT[0]}, s{sT[0]}, 9
            v_lshlrev_b32 v{vTmp}, 7, v{vL}
            s_mov_b64 exec, 0xf
            """)
            a(f"buffer_load_dword v148, v{vTmp}, {srd(sC0)}, s{sT[0]} offen", "touch")
            a(f"buffer_load_dword v149, v{vTmp}, {srd(sC1)}, s{sT[0]} offen", "touch")
            a("s_mov_b64 exec, -1")

def stats():
    e = 132
    for i in range(4):
        a(f"v_lshlrev_b32 v{e+2*i}, 16, v{vROW+i}\nv_and_b32 v{e+2*i+1}, s{sMASK}, v{vROW+i}")
    s = 140
    a(f"v_add_f32 v{s}, v{e}, v{e+1}\nv_add_f32 v{s+1}, v{e+2}, v{e+3}\nv_add_f32 v{s+2}, v{e+4}, v{e+5}\nv_add_f32 v{s+3}, v{e+6}, v{e+7}")
    a(f"v_add_f32 v{s}, v{s}, v{s+1}\nv_add_f32 v{s+2}, v{s+2}, v{s+3}\nv_add_f32 v{s}, v{s}, v{s+2}")
    dpp_sum(s)
    a(f"v_readlane_b32 s{sT[0]}, v{s}, 63")
    a(f"v_mov_b32 v{s+1}, 0x3b000000\nv_mul_f32 v{s+1}, s{sT[0]}, v{s+1}")
    for i in range(8): a(f"v_sub_f32 v{e+i}, v{e+i}, v{s+1}")
    a(f"v_mul_f32 v{s}, v{e}, v{e}\nv_mul_f32 v{s+2}, v{e+1}, v{e+1}")
    for i in range(2, 8): a(f"v_fmac_f32 v{s+(i&1)*2}, v{e+i}, v{e+i}")
    a(f"v_add_f32 v{s}, v{s}, v{s+2}")
    dpp_sum(s)
    a(f"""
    v_mul_f32 v{s}, 0x3b000000, v{s}
    v_cvt_pk_bf16_f32 v{s+2}, v{s}, v{s+1}
    v_lshlrev_b32 v{s}, 16, v{s+2}
    v_add_f32 v{s}, 0x3727c5ac, v{s}
    v_cvt_pk_bf16_f32 v{s}, v{s}, v{s}
    v_lshlrev_b32 v{s}, 16, v{s}
    v_sqrt_f32 v{s}, v{s}
    v_cvt_pk_bf16_f32 v{s+4}, v{s}, v{s+1}
    s_waitcnt lgkmcnt(0)
    s_add_u32 s{sTAG}, s{sTAG}, 0x9e3779b9
    s_mov_b32 s{sTAG+1}, s{sTAG}
    v_mov_b32 v{s+5}, s{sTAG}
    s_lshl_b32 s{sT[0]}, s{sT[4]}, 3
    s_add_u32 s{sT[0]}, s{sT[0]}, {WS_STAT}
    v_mov_b32 v{s+6}, 0
    s_mov_b32 exec_lo, 0
    s_mov_b32 exec_hi, 0x80000000
    """)
    a(f"buffer_store_dwordx2 {vr(s+4,2)}, v{s+6}, {srd(sWS)}, s{sT[0]} offen sc1", "stat_st")
    a("s_mov_b64 exec, -1")

def stat_load(tag):
    a(f"buffer_load_dwordx2 {vr(vST,2)}, v{vSTA}, {srd(sWS)}, s{sT[5]} offen sc1", tag)
def stat_check():
    top, done = newlabel("stp"), newlabel("std")
    a(f"s_mov_b32 s{sT[3]}, {SPIN}")
    a.wait(vm="stat_ld")
    a.label(top)
    a(f"v_cmp_ne_u32 vcc, s{sTAG}, v{vST+1}\ns_cmp_eq_u64 vcc, 0\ns_cbranch_scc1 {done}")
    st = a.fork()
    a("s_sleep 2")
    stat_load(None)
    a(f"s_waitcnt vmcnt(0)\ns_sub_u32 s{sT[3]}, s{sT[3]}, 1\ns_cmp_lg_u32 s{sT[3]}, 0\ns_cbranch_scc1 {top}")
    a.label(done)
    a.restore(st)

def colsum_ops(frags, vlo, vhi):
    ops = []
    for n, (r, b) in enumerate(frags):
        t0, t1 = 20 + 2*(n & 1), 21 + 2*(n & 1)
        ops.append(f"v_lshlrev_b32 v{t0}, 16, v{r}")
        ops.append(f"v_and_b32 v{t1}, s{sMASK}, v{r}")
        ops.append(f"v_add_f32 v{vlo+b}, v{vlo+b}, v{t0}")
        ops.append(f"v_add_f32 v{vhi+b}, v{vhi+b}, v{t1}")
    return ops

def p1_loop(nb, reads, mfma, dma, wset, vlo, vhi, extra_dma, hook):
    a.wait(vm=("c", 0)); a("s_barrier")
    stamp("c0")
    reads(0)
    pend_dma = []; pend_cs = []
    for n in range(32):
        c, s = n >> 2, n & 3
        if s == 0:
            pend_dma = dma(c + NST - 1) if c + NST - 1 < 8 else extra_dma(c)
            pend_cs = colsum_ops([(wset(n) + 4*b + i, b) for b in range(nb) for i in range(4)], vlo, vhi)
        if n + 1 < 32:
            if s == 3:
                hook(c)
                a.wait(vm=("c", c + 1), lg=("r", n)); a("s_barrier")
                stamp(f"c{c+1}")
                reads(n + 1)
            else:
                reads(n + 1); a.wait(lg=("r", n))
        else:
            a.wait(lg=("r", n))
        if n == OPT["statn"]: stat_load("stat_ld")
        ncs = (len(pend_cs) + (2 - s)) // (3 - s) if s < 3 else 0
        per = (ncs + nb - 1) // nb
        nd = (len(pend_dma) + (2 - s)) // (3 - s) if s < 3 else 0
        for b in range(nb):
            mfma(n, b)
            if nd > 0 and pend_dma:
                pend_dma.pop(0)(); nd -= 1
            for _ in range(min(per, ncs)):
                a(pend_cs.pop(0)); ncs -= 1
        assert s < 2 or (not pend_cs and not pend_dma), (n, len(pend_cs), len(pend_dma))

def cs_exchange(nb, stream, vlo, vhi):
    for b in range(nb): a(f"v_add_f32 v{vlo+b}, v{vlo+b}, v{vhi+b}")
    for b in range(nb): a(f"v_mov_b32 v{vhi+b}, v{vlo+b}")
    for b in range(nb): a(f"v_permlane32_swap_b32 v{vlo+b}, v{vhi+b}")
    for b in range(nb): a(f"v_add_f32 v{20+b}, v{vlo+b}, v{vhi+b}")
    a(f"""
    v_and_b32 v24, 31, v{vL}
    v_lshlrev_b32 v24, 4, v24
    v_add_u32 v24, {L_CS + stream*2048}, v24
    s_lshl_b32 s{sT[0]}, s{sG}, 9
    v_add_u32 v25, s{sT[0]}, v24
    ds_write_b128 v25, v[20:23]
    """)
def cs_read():
    for g in range(4): a(f"ds_read_b128 {vr(32+4*g,4)}, v24 offset:{512*g}", "cs")
def cs_finish(nb, dst):
    a.wait(lg="cs")
    for b in range(nb):
        a(f"v_add_f32 v{32+b}, v{32+b}, v{36+b}\nv_add_f32 v{40+b}, v{40+b}, v{44+b}")
    for b in range(nb):
        a(f"v_add_f32 v{32+b}, v{32+b}, v{40+b}")
    for b in range(nb):
        a(f"v_and_b32 v{36+b}, s{sMASK}, v{32+b}\nv_sub_f32 v{32+b}, v{32+b}, v{36+b}\nv_cvt_pk_bf16_f32 v{dst+4*b}, v{32+b}, v{36+b}")
def aug_zero(nb, dst, xa):
    for b in range(nb):
        a(f"v_mov_b32 v{dst+4*b+1}, 0\nv_mov_b32 v{dst+4*b+2}, 0\nv_mov_b32 v{dst+4*b+3}, 0")
    a(f"v_mov_b32 v{xa+1}, 0\nv_mov_b32 v{xa+2}, 0\nv_mov_b32 v{xa+3}, 0")
def xaug(dst):
    a(f"""
    v_and_b32 v{dst}, s{sMASK}, v{vST}
    v_cmp_gt_u32 vcc, 32, v{vL}
    v_cvt_pk_bf16_f32 v{dst}, -v{dst}, -v{dst}
    v_cndmask_b32 v{dst}, 0, v{dst}, vcc
    """)

def flag_prep(stream, dst):
    a(f"""
    s_lshl_b32 s{sT[0]}, s{sMB}, 1
    s_lshr_b32 s{sT[1]}, s{sG}, 1
    s_add_u32 s{sT[0]}, s{sT[0]}, s{sT[1]}
    s_lshl_b32 s{sT[0]}, s{sT[0]}, 4
    s_add_u32 s{sT[0]}, s{sT[0]}, s{sJ}
    s_lshl_b32 s{sT[0]}, s{sT[0]}, {FSH}
    s_and_b32 s{sT[1]}, s{sG}, 1
    s_lshl_b32 s{sT[1]}, s{sT[1]}, 2
    s_add_u32 s{sT[0]}, s{sT[0]}, s{sT[1]}
    s_add_u32 s{dst}, s{sT[0]}, {WS_FLAG + stream*FSTR}
    v_mov_b32 v18, s{sTAG}
    v_mov_b32 v19, 0
    """)
def flag_store(src):
    a.wait(vm="hid_st")
    a("s_mov_b64 exec, 1")
    a(f"buffer_store_dword v18, v19, {srd(sWS)}, s{src} offen sc1", "flag_st")
    a("s_mov_b64 exec, -1")
def flag_poll(stream, n):
    top, done, retry = newlabel("fp"), newlabel("fd"), newlabel("fr")
    a(f"""
    s_lshl_b32 s{sT[1]}, s{sRB}, 4
    s_add_u32 s{sT[0]}, s{sT[0]}, s{sT[1]}
    s_lshl_b32 s{sT[0]}, s{sT[0]}, {FSH}
    s_add_u32 s{sT[0]}, s{sT[0]}, {WS_FLAG + stream*FSTR}
    s_add_u32 s20, s36, s{sT[0]}
    s_addc_u32 s21, s37, 0
    s_mov_b32 s{sT[3]}, {SPIN}
    """)
    a.label(top)
    for i in range(n): a(f"s_load_dwordx2 s[{8+2*i}:{9+2*i}], s[20:21], {i << FSH} glc")
    a("s_waitcnt lgkmcnt(0)")
    for i in range(n - 1):
        a(f"s_cmp_lg_u64 s[{8+2*i}:{9+2*i}], s[{sTAG}:{sTAG+1}]\ns_cbranch_scc1 {retry}")
    i = n - 1
    a(f"s_cmp_eq_u64 s[{8+2*i}:{9+2*i}], s[{sTAG}:{sTAG+1}]\ns_cbranch_scc1 {done}")
    a.label(retry)
    if OPT["psleep"]: a(f"s_sleep {OPT['psleep']}")
    a(f"s_sub_u32 s{sT[3]}, s{sT[3]}, 1\ns_cmp_lg_u32 s{sT[3]}, 0\ns_cbranch_scc1 {top}")
    a.label(done)

ACC2, ABUF, DA, BT = 64, 16, OPT["DA"], 216
def p2_loop(nsteps, held, heldreg, breads, aoff):
    def aload(n):
        sg = aoff(n)
        r = ABUF + 8*(n % DA)
        m = " sc1" if OPT["asc1"] else ""
        a(f"buffer_load_dwordx4 {vr(r,4)}, v2, {srd(sWS)}, s{sg} offen{m}", ("a", n))
        a(f"buffer_load_dwordx4 {vr(r+4,4)}, v3, {srd(sWS)}, s{sg} offen{m}", ("a", n))
    for n in range(min(DA, nsteps)): aload(n)
    for n in range(nsteps):
        a.wait(vm=("a", n))
        if held <= n + 1 < nsteps: breads(n + 1, BT + 8*((n + 1) & 1))
        if n >= held: a.wait(lg=("b", n))
        w = heldreg + 8*n if n < held else BT + 8*(n & 1)
        r = ABUF + 8*(n % DA)
        for tb in range(2):
            for db in range(2):
                acc = ACC2 + 16*(2*db + tb)
                c = "0" if n == 0 else vr(acc, 16)
                a(f"v_mfma_f32_32x32x16_bf16 {vr(acc,16)}, {vr(w+4*db,4)}, {vr(r+4*tb,4)}, {c}")
        if n in (0, 5, 10, 15): stamp(f'a{n}')
        if n + DA < nsteps: aload(n + DA)
        if n + DA == nsteps: resid_load()

def hid_voffs():
    a(f"v_lshlrev_b32 v2, 4, v{vL}\nv_add_u32 v3, {KS*1024}, v2")

def resid_load():
    a(f"""
    v_lshrrev_b32 v232, 4, v0
    v_and_b32 v233, 15, v0
    v_bfe_u32 v234, v232, 2, 1
    v_lshrrev_b32 v235, 3, v232
    v_and_b32 v236, 3, v232
    v_lshl_add_u32 v236, v234, 4, v236
    v_lshl_add_u32 v236, v235, 2, v236
    v_lshlrev_b32 v234, 10, v236
    v_lshl_add_u32 v234, v233, 3, v234
    v_lshlrev_b32 v235, 3, v236
    s_lshl_b32 s{sT[0]}, s{sRB}, 16
    s_lshl_b32 s{sT[1]}, s{sNB}, 7
    s_add_u32 s{sT[0]}, s{sT[0]}, s{sT[1]}
    s_add_u32 s{sT[2]}, s{sT[0]}, 0x8000
    """)
    a(f"buffer_load_dwordx2 v[240:241], v234, {srd(sX)}, s{sT[0]} offen", "res")
    a(f"buffer_load_dwordx2 v[242:243], v234, {srd(sX)}, s{sT[2]} offen", "res")
    a(f"s_lshl_b32 s{sT[0]}, s{sRB}, 9\ns_add_u32 s{sT[0]}, s{sT[0]}, {WS_STAT}")
    a(f"buffer_load_dword v244, v235, {srd(sWS)}, s{sT[0]} offen sc1", "res")
    a(f"buffer_load_dword v245, v235, {srd(sWS)}, s{sT[0]} offen offset:256 sc1", "res")
    a(f"v_lshlrev_b32 v237, 3, v233\nv_add_u32 v237, s{sT[1]}, v237")
    a(f"global_load_dwordx2 v[246:247], v237, s[24:25]", "res")

def dump(b0, b1, off1):
    a(f"""
    v_and_b32 v4, 31, v{vL}
    v_lshrrev_b32 v5, 5, v{vL}
    v_and_b32 v6, 7, v{vL}
    v_xor_b32 v5, v5, v6
    v_lshlrev_b32 v5, 4, v5
    v_lshl_add_u32 v12, v4, 7, v5
    v_add_u32 v4, s{b0}, v12
    v_xor_b32 v5, 32, v4
    v_xor_b32 v6, 64, v4
    v_xor_b32 v7, 0x60, v4
    v_add_u32 v8, s{b1}, v12
    v_xor_b32 v9, 32, v8
    v_xor_b32 v10, 64, v8
    v_xor_b32 v11, 0x60, v8
    """)
    for tb in range(2):
        for db in range(2):
            for g in range(4):
                a(f"ds_write_b128 v{4+4*tb+g}, {vr(ACC2+16*(2*db+tb)+4*g,4)} offset:{tb*off1+db*4096}")

cur_stream[0] = "F"
a.restore(stC); a.vm = stF0[1] + common_ops
for f in dmaF(1): f()
touches("F")
a(f"""
v_bfe_u32 v{vTmp}, v{vL}, 2, 2
v_lshl_add_u32 v{vTmp}, v{vH}, 3, v{vTmp}
v_lshlrev_b32 v{vTmp}, 6, v{vTmp}
v_bfe_u32 v{vTmp2}, v{vL}, 4, 1
v_lshl_add_u32 v{vTmp}, v{vTmp2}, 5, v{vTmp}
v_and_b32 v{vTmp2}, 1, v{vL}
v_lshl_add_u32 v{vTmp}, v{vTmp2}, 4, v{vTmp}
v_bfe_u32 v{vTmp2}, v{vL}, 1, 1
v_lshl_add_u32 v{vTmp}, v{vTmp2}, 3, v{vTmp}
""")
for s in range(4):
    a(f"s_xor_b32 s{sT[0]}, s{sG}, {s}\ns_mul_i32 s{sT[0]}, s{sT[0]}, 3072\ns_add_u32 s{sT[0]}, s{sT[0]}, {L_W1}\nv_add_u32 v{vWA+s}, s{sT[0]}, v{vTmp}")
a(f"""
v_lshrrev_b32 v248, 3, v{vL}
v_and_b32 v{vTmp}, 7, v{vL}
v_bfe_u32 v{vTmp2}, v{vL}, 4, 1
v_lshlrev_b32 v{vTmp2}, 2, v{vTmp2}
v_xor_b32 v{vTmp}, v{vTmp}, v{vTmp2}
v_lshlrev_b32 v{vTmp}, 4, v{vTmp}
v_lshl_add_u32 v248, v248, 10, v{vTmp}
v_add_u32 v253, 0x1c00, v248
v_bfe_u32 v{vTmp}, v{vL}, 2, 2
v_lshl_add_u32 v249, v{vH}, 3, v{vTmp}
v_lshlrev_b32 v249, 7, v249
v_bfe_u32 v{vTmp}, v{vL}, 3, 1
v_lshl_add_u32 v249, v{vTmp}, 6, v249
v_bfe_u32 v{vTmp}, v{vL}, 4, 1
v_lshl_add_u32 v249, v{vTmp}, 5, v249
v_and_b32 v{vTmp}, 3, v{vL}
v_lshl_add_u32 v249, v{vTmp}, 3, v249
s_lshl_b32 s{sE}, s{sG}, 12
s_add_u32 s{sE}, s{sE}, {L_FE}
s_mul_i32 s{sLt}, s{sG}, {FLSZ}
v_add_u32 v251, s{sLt}, v249
v_add_u32 v249, s{sE}, v249
v_xor_b32 v250, 64, v249
v_xor_b32 v252, 64, v251
s_mul_i32 s{sT[6]}, s{sG}, {352*1024}
s_lshl_b32 s{sT[0]}, s{sNB}, 7
s_add_u32 s{sT[6]}, s{sT[6]}, s{sT[0]}
""")
def rotF(n, dst, base, mul):
    a(f"s_add_u32 s{dst}, s{sR2F}, {n}\ns_cmp_ge_u32 s{dst}, 22\ns_cselect_b32 s{sT[1]}, 22, 0\ns_sub_u32 s{dst}, s{dst}, s{sT[1]}\ns_mul_i32 s{dst}, s{dst}, {mul}\ns_add_u32 s{dst}, s{dst}, s{base}")
def w2half(n, i):
    slot = n % 11
    if i == 0: rotF(n, sT[2], sT[6], 16384)
    if slot < 2: a(f"s_add_u32 m0, s{sE}, {slot*2048}")
    else: a(f"s_add_u32 m0, s{sLt}, {(slot-2)*2048}")
    a(f"buffer_load_dwordx4 v{253 if i else 248}, {srd(sW2)}, s{sT[2]} offen offset:{1024*i} lds", ("w", n))
def w2step(n): w2half(n, 0); w2half(n, 1)
def breadsF(n, dst):
    slot = n % 11
    for db in range(2):
        for u in range(2):
            va, off = (249 + db, slot*2048) if slot < 2 else (251 + db, (slot-2)*2048)
            a(f"ds_read_b64_tr_b16 {vr(dst+4*db+2*u,2)}, v{va} offset:{off + u*512}", ("b", n))
a.wait(vm="row")
stamp("row")
stats()
stamp("stats")
ACC1 = 80
wsetF = lambda n: (40, 52, 64, 52)[n & 3]
def readsF(n):
    c, s = n >> 2, n & 3
    a(f"ds_read_b128 {vr(32+4*(n&1),4)}, v{vXA+s} offset:{(c % NST)*16384}", ("r", n))
    for b in range(3):
        for u in range(2):
            a(f"ds_read_b64_tr_b16 {vr(wsetF(n)+4*b+2*u,2)}, v{vWA+s} offset:{(c % NST)*12288+b*1024+u*256}", ("r", n))
def mfmaF(n, b):
    acc = vr(ACC1+16*b, 16)
    a(f"v_mfma_f32_32x32x16_bf16 {acc}, {vr(wsetF(n)+4*b,4)}, {vr(32+4*(n&1),4)}, {'0' if n == 0 else acc}")
def extraF(c):
    n = c - 6
    return [lambda: w2half(n, 0), lambda: w2half(n, 1)]
p1_loop(3, readsF, mfmaF, dmaF, wsetF, 14, 17, extraF, lambda c: None)
stamp("p1end")
cs_exchange(3, 0, 14, 17)
stat_check()
aug_zero(3, 64, 48)
xaug(48)
a("s_waitcnt lgkmcnt(0)\ns_barrier")
stamp("B1")
cs_read()
wq = list(range(2, 11))
for _ in range(OPT["fe"]): w2step(wq.pop(0))
a(f"""
v_lshlrev_b32 v54, 16, v{vST}
v_rcp_f32 v52, v54
v_mul_f32 v52, 0xbfb8aa3b, v52
s_lshl_b32 s{sT[0]}, s{sMB}, 2
s_add_u32 s{sT[0]}, s{sT[0]}, s{sG}
s_mul_i32 s{sT[0]}, s{sT[0]}, {KS*1024}
s_lshl_b32 s{sT[1]}, s{sSB}, 11
s_add_u32 s{sT[0]}, s{sT[0]}, s{sT[1]}
s_add_u32 s{sT[4]}, s{sT[0]}, {WS_HID}
s_add_u32 s{sT[5]}, s{sT[4]}, 4096
s_sub_u32 s{sT[0]}, s{sJ}, 11
s_cmp_lt_u32 s{sT[0]}, 4
s_cselect_b32 s{sT[0]}, 0x7ff00000, 0
v_add_u32 v5, s{sT[0]}, v31
""")
cs_finish(3, 64)
for b in range(3):
    acc = vr(ACC1+16*b, 16)
    a(f"v_mfma_f32_32x32x16_bf16 {acc}, {vr(64+4*b,4)}, v[48:51], {acc}")
flag_prep(0, sT[7])
halfq = []
for b in range(3):
    A = ACC1 + 16*b
    for f in range(2):
        z = 32 + 8*f
        o = 56 + 4*((2*b+f) & 1)
        for m in range(4):
            a(f"v_pk_mul_f32 {vr(z+2*m,2)}, {vr(A+8*f+2*m,2)}, v[52:53] op_sel_hi:[1,0]")
        for m in range(8): a(f"v_exp_f32 v{z+m}, v{z+m}")
        for m in range(4):
            a(f"v_pk_fma_f32 {vr(z+2*m,2)}, {vr(z+2*m,2)}, v[54:55], v[54:55] op_sel_hi:[1,0,0]")
        for m in range(8): a(f"v_rcp_f32 v{z+m}, v{z+m}")
        for m in range(4):
            a(f"v_pk_mul_f32 {vr(z+2*m,2)}, {vr(z+2*m,2)}, {vr(A+8*f+2*m,2)}")
        for m in range(4):
            a(f"v_cvt_pk_bf16_f32 v{o+m}, v{z+2*m}, v{z+2*m+1}")
        sg, imm = (sT[4], b*2048 + f*1024) if b < 2 else (sT[5], f*1024)
        a(f"buffer_store_dwordx4 {vr(o,4)}, v{31 if b < 2 else 5}, {srd(sWS)}, s{sg} offen offset:{imm} sc1", "hid_st")
        if wq and not (b == 2 and f == 1):
            w2half(wq[0], f)
            if f == 1: wq.pop(0)
            elif b == 2: halfq.append(wq.pop(0))
    if b == 0: stamp("blk0"); a("s_barrier"); stamp("B2")
stamp("epi_done")
for n in halfq: w2half(n, 1)
W = OPT["wF"]
flagged = False
drained = 0
seq = wq + list(range(11, 22))
issued = [n for n in range(0, 11) if n not in wq]
for m in seq:
    if len(issued) >= W: a.wait(vm=("w", issued[-W]))
    if not flagged and "hid_st" not in a.vm:
        flag_store(sT[7]); flagged = True; stamp("flagst")
    if m >= 11:
        a.wait(vm=("w", m - 11))
        breadsF(m - 11, 128 + 8*(m - 11)); a.wait(lg=("b", m - 11))
    w2step(m); issued.append(m)
    if m in (9, 12, 15, 18): stamp(f'w{m}')
assert flagged
stamp("w2issued")
hid_voffs()
a(f"""
s_mul_i32 s{sT[0]}, s{sG}, 3
s_cmp_eq_u32 s{sG}, 3
s_cselect_b32 s{sT[0]}, 11, s{sT[0]}
s_mul_i32 s{sT[4]}, s{sRB}, {2*KS*1024}
s_mul_i32 s{sT[2]}, s{sG}, {22*1024}
s_add_u32 s{sT[4]}, s{sT[4]}, s{sT[2]}
s_add_u32 s{sT[4]}, s{sT[4]}, {WS_HID}
""")
flag_poll(0, 5)
stamp("polled")
def aoffF(n):
    rotF(n, sT[9], sT[4], 1024); return sT[9]
p2_loop(22, 11, 128, breadsF, aoffF)
stamp("p2end")
dump(sLt, sLt, 8192)
stamp("dumped")
stamp_flush()
a("s_branch L_final")

cur_stream[0] = "S"
a.restore(stC); a.vm = stS0[1] + common_ops
a.raw(".p2align 6")
a.label("L_S")
for f in dmaS(1): f()
a(f"s_lshl_b32 s{sT[0]}, s{sJ}, 6\nv_lshl_add_u32 v{vTmp}, v{vI}, 1, s{sT[0]}")
a(f"global_load_ushort v150, v{vTmp}, s[10:11]", "par")
a(f"global_load_ushort v151, v{vTmp}, s[12:13]", "par")
a(f"global_load_ushort v152, v{vTmp}, s[22:23]", "par")
touches("S")
a(f"s_lshl_b32 s{sT[0]}, s{sG}, 12\ns_sub_u32 s{sT[0]}, {L_BW}, s{sT[0]}")
for s in range(4): a(f"v_add_u32 v{vBA+s}, s{sT[0]}, v{vXA+s}")
a(f"""
v_lshrrev_b32 v248, 3, v{vL}
v_lshl_add_u32 v248, v248, 10, v27
v_xor_b32 v249, 64, v248
s_lshl_b32 s{sE}, s{sG}, 13
s_add_u32 s{sLt}, s{sE}, {L_SL}
s_add_u32 s{sE}, s{sE}, {L_SE}
s_lshr_b32 s{sT[0]}, s{sR2S}, 2
s_and_b32 s{sT[0]}, s{sT[0]}, 1
s_lshl_b32 s{sT[0]}, s{sT[0]}, 2
v_xor_b32 v{vTmp}, v{vH}, v{vF}
v_xor_b32 v{vTmp}, s{sT[0]}, v{vTmp}
v_lshlrev_b32 v{vTmp}, 4, v{vTmp}
v_lshl_add_u32 v{vTmp}, v{vI}, 7, v{vTmp}
v_add_u32 v250, s{sE}, v{vTmp}
v_xor_b32 v251, 32, v250
v_xor_b32 v252, 64, v250
v_xor_b32 v253, 0x60, v250
v_add_u32 v232, s{sLt}, v{vTmp}
v_xor_b32 v233, 32, v232
v_xor_b32 v234, 64, v232
v_xor_b32 v235, 0x60, v232
s_lshl_b32 s0, s{sNB}, 16
s_lshl_b32 s{sT[0]}, s{sG}, 8
s_add_u32 s0, s0, s{sT[0]}
s_lshr_b32 s{sT[0]}, s{sR2S}, 3
s_lshl_b32 s{sT[0]}, s{sT[0]}, 7
s_add_u32 s0, s0, s{sT[0]}
s_xor_b32 s1, s0, 128
""")
def cdma(r, part, i):
    a(f"s_add_u32 m0, s{sLt if part else sE}, {i*1024}\ns_add_u32 s{sT[1]}, s{r}, {i*8192}")
    a(f"buffer_load_dwordx4 v{248+(i&1)}, {srd(sC1 if part else sC0)}, s{sT[1]} offen lds", ("w", r, part))
def breadsS(n, dst):
    jl, part, half = (n >> 2) & 1, (n >> 1) & 1, n & 1
    for db in range(2):
        a(f"ds_read_b128 {vr(dst+4*db,4)}, v{(6 if part else 250)+2*jl+half} offset:{db*4096}", ("b", n))
a.wait(vm="row")
stamp("row")
stats()
stamp("stats")
vLam, vK, vL16, vL128, vL256, vPW = 112, 114, 116, 118, 120, 122
def params():
    a.wait(vm="par")
    a(f"""
    v_lshlrev_b32 v150, 16, v150
    v_lshlrev_b32 v151, 16, v151
    v_lshlrev_b32 v152, 16, v152
    v_mul_f32 v152, 0x3fb8aa3b, v152
    v_exp_f32 v152, v152
    v_cvt_pk_bf16_f32 v152, v152, v152
    v_lshlrev_b32 v152, 16, v152
    v_mul_f32 v153, v152, v150
    v_mul_f32 v154, v152, v151
    v_mul_f32 v153, 0x3fb8aa3b, v153
    v_exp_f32 v153, v153
    v_mul_f32 v154, 0.15915494, v154
    v_rndne_f32 v155, v154
    v_sub_f32 v154, v154, v155
    v_cos_f32 v155, v154
    v_sin_f32 v156, v154
    v_mul_f32 v{vLam}, v153, v155
    v_mul_f32 v{vLam+1}, v153, v156
    v_add_f32 v153, -1.0, v{vLam}
    v_mul_f32 v154, v150, v150
    v_fmac_f32 v154, v151, v151
    v_rcp_f32 v154, v154
    v_mul_f32 v155, v153, v150
    v_fmac_f32 v155, v{vLam+1}, v151
    v_mul_f32 v156, v{vLam+1}, v150
    v_fma_f32 v156, -v153, v151, v156
    v_add_f32 v154, v154, v154
    v_mul_f32 v{vK}, v155, v154
    v_mul_f32 v{vK+1}, v156, v154
    """)
    cmul(150, vLam, vLam); cmul(152, 150, 150); cmul(150, 152, 152); cmul(vL16, 150, 150)
    cmul(150, vL16, vL16); cmul(152, 150, 150)
    cmul(vL128, 152, 152); cmul(vL256, vL128, vL128)
    a(f"""
    v_cmp_gt_u32 vcc, 32, v{vL}
    v_cndmask_b32 v154, v{vL16}, 1.0, vcc
    v_cndmask_b32 v155, v{vL16+1}, 0, vcc
    s_bitcmp1_b32 s{sG}, 0
    s_cselect_b64 vcc, -1, 0
    v_cndmask_b32 v150, 1.0, v150, vcc
    v_cndmask_b32 v151, 0, v151, vcc
    s_bitcmp1_b32 s{sG}, 1
    s_cselect_b64 vcc, -1, 0
    v_cndmask_b32 v152, 1.0, v152, vcc
    v_cndmask_b32 v153, 0, v153, vcc
    """)
    cmul(156, 154, 150); cmul(vPW, 156, 152)
    a(f"""
    v_lshrrev_b32 v244, 5, v{vL}
    v_sub_u32 v244, s{sMB}, v244
    v_subrev_u32 v244, 1, v244
    v_and_b32 v150, 31, v{vL}
    v_lshlrev_b32 v150, 4, v150
    v_lshl_add_u32 v150, v244, 13, v150
    v_mov_b32 v151, 0x7ff00000
    """)
    for i in range(8):
        a(f"v_subrev_u32 v{236+i}, {i*16384}, v150")
        a(f"v_cmp_le_i32 vcc, {2*i}, v244\nv_cndmask_b32 v{236+i}, v151, v{236+i}, vcc")
wsetS = lambda n: (40, 52, 64, 52)[n & 3]
def readsS(n):
    c, s = n >> 2, n & 3
    a(f"ds_read_b128 {vr(32+4*(n&1),4)}, v{vXA+s} offset:{(c % NST)*16384}", ("r", n))
    for b in range(2):
        a(f"ds_read_b128 {vr(wsetS(n)+4*b,4)}, v{vBA+s} offset:{(c % NST)*8192+b*4096}", ("r", n))
def mfmaS(n, b):
    acc = vr(ACC1+16*b, 16)
    a(f"v_mfma_f32_32x32x16_bf16 {acc}, {vr(32+4*(n&1),4)}, {vr(wsetS(n)+4*b,4)}, {'0' if n == 0 else acc}")
def extraS(c):
    return [(lambda i=i: cdma(0, 0, i)) for i in range(4*(c-6), 4*(c-6)+4)]
p1_loop(2, readsS, mfmaS, dmaS, wsetS, 14, 17, extraS, lambda c: params() if c == 1 else None)
stamp("p1end")
if OPT["prio"]: a("s_setprio 2")
cs_exchange(2, 1, 14, 17)
stat_check()
aug_zero(2, 64, 48)
xaug(48)
a(f"""
v_lshlrev_b32 v60, 16, v{vST}
v_rcp_f32 v60, v60
s_lshl_b32 s{sT[0]}, s{sG}, 7
s_add_u32 s{sT[0]}, s{sT[0]}, {L_RB}
v_lshl_add_u32 v61, v{vTI}, 2, s{sT[0]}
v_lshrrev_b32 v62, 5, v{vL}
v_lshl_add_u32 v62, v62, 6, s{sT[0]}
v_mov_b32 v6, v232
v_mov_b32 v7, v233
v_mov_b32 v8, v234
v_mov_b32 v9, v235
""")
a("s_waitcnt lgkmcnt(0)\ns_barrier")
stamp("B1")
cs_read()
a("ds_write_b32 v61, v60", "rw")
cq = [(0, 1, i) for i in range(8)]
for _ in range(2): cdma(*cq.pop(0))
cs_finish(2, 64)
for b in range(2):
    acc = vr(ACC1+16*b, 16)
    a(f"v_mfma_f32_32x32x16_bf16 {acc}, v[48:51], {vr(64+4*b,4)}, {acc}")
a.wait(lg="rw")
vR, vU = 32, 192
for q in range(4): a(f"ds_read_b128 {vr(vR+4*q,4)}, v62 offset:{16*q}", "rr")
a(f"""
v_and_b32 v54, 31, v{vL}
v_lshlrev_b32 v54, 3, v54
v_add_u32 v54, {L_SEG}, v54
s_lshl_b32 s{sT[0]}, s{sG}, 9
v_lshl_add_u32 v55, v{vL}, 3, s{sT[0]}
v_add_u32 v55, {L_SEG}, v55
v_mov_b32 v74, s{sTAG}
v_mov_b32 v75, s{sTAG}
s_cmp_eq_u32 s{sG}, 0
s_cselect_b32 s{sT[1]}, 0, 0x7ff00000
v_add_u32 v76, s{sT[1]}, v31
""")
for t in range(16):
    e, o = t & ~1, t & 1
    a(f"v_pk_mul_f32 {vr(vU+2*t,2)}, {vr(vK,2)}, {vr(ACC1+e,2)} op_sel:[0,{o}] op_sel_hi:[1,{o}]")
    a(f"v_pk_fma_f32 {vr(vU+2*t,2)}, {vr(vK,2)}, {vr(ACC1+16+e,2)}, {vr(vU+2*t,2)} op_sel:[1,{o},0] op_sel_hi:[0,{o},1] neg_lo:[1,0,0]")
a.wait(lg="rr")
for t in range(16):
    e, o = t & ~1, t & 1
    a(f"v_pk_mul_f32 {vr(vU+2*t,2)}, {vr(vU+2*t,2)}, {vr(vR+e,2)} op_sel:[0,{o}] op_sel_hi:[1,{o}]")
cur = vU
for t in range(1, 16):
    d = 48 + 2*(t & 1)
    cfma(d, vLam, cur, vU + 2*t, 52)
    cur = d
a(f"ds_write_b64 v55, {vr(cur,2)}\ns_waitcnt lgkmcnt(0)")
stamp("pass1")
a("s_barrier")
for sgi in range(8): a(f"ds_read_b64 {vr(56+2*sgi,2)}, v54 offset:{256*sgi}", "seg")
a(f"""
s_lshl_b32 s{sT[0]}, s{sG}, 1
v_lshrrev_b32 v53, 5, v{vL}
v_add_u32 v53, s{sT[0]}, v53
v_mov_b32 v124, 0
v_mov_b32 v125, 0
s_lshl_b32 s{sT[0]}, s{sMB}, 13
s_lshl_b32 s{sT[1]}, s{sJ}, 9
s_add_u32 s{sT[4]}, s{sT[1]}, {WS_EGR}
s_add_u32 s{sT[0]}, s{sT[0]}, s{sT[4]}
""")
a.wait(lg="seg")
cur = 56
for jx in range(1, 8):
    d = 32 + 2*jx if jx < 7 else 72
    cfma(d, vL16, cur, 56 + 2*jx, 56 + 2*jx)
    cur = d
a("s_mov_b32 exec_hi, 0")
a(f"buffer_store_dwordx4 v[72:75], v76, {srd(sWS)}, s{sT[0]} offen sc1", "e_st")
a("s_mov_b64 exec, -1")
stamp("Epub")
for jx in range(1, 8):
    src = 56 if jx == 1 else 32 + 2*(jx-1)
    a(f"v_cmp_eq_u32 vcc, {jx}, v53\nv_cndmask_b32 v124, v124, v{src}, vcc\nv_cndmask_b32 v125, v125, v{src+1}, vcc")
while cq: cdma(*cq.pop(0))
a.wait(vm=("w", 0, 0))
for n in (0, 1, 4, 5): breadsS(n, 128 + 8*n)
a("s_waitcnt lgkmcnt(0)")
cq = [(1, 0, i) for i in range(8)]
for _ in range(OPT["n1S"]):
    a(f"s_waitcnt vmcnt(5)")
    cdma(*cq.pop(0))
stamp("lbissue")
top, done = newlabel("lb"), newlabel("lbd")
a(f"s_mov_b32 s{sT[3]}, {SPIN}")
a.label(top)
for i in range(8):
    a(f"buffer_load_dwordx4 {vr(48+4*i,4)}, v{236+i}, {srd(sWS)}, s{sT[4]} offen sc1")
a("s_waitcnt vmcnt(0)\ns_mov_b64 s[32:33], 0")
for i in range(8):
    a(f"v_cmp_ne_u32 vcc, s{sTAG}, v{48+4*i+2}\nv_cmp_le_i32 s[8:9], {2*i}, v244\ns_and_b64 vcc, vcc, s[8:9]\ns_or_b64 s[32:33], s[32:33], vcc")
a(f"s_cbranch_scc0 {done}")
a(f"s_sleep 1\ns_sub_u32 s{sT[3]}, s{sT[3]}, 1\ns_cmp_lg_u32 s{sT[3]}, 0\ns_cbranch_scc1 {top}")
a.label(done)
stamp("lookback")
for n in (2, 3, 6, 7): breadsS(n, 128 + 8*n)
while cq: cdma(*cq.pop(0))
cur = 48 + 4*7
for i in range(6, -1, -1):
    cfma(48 + 4*i, vL256, cur, 48 + 4*i, 48 + 4*i)
    cur = 48 + 4*i
a("v_mov_b32 v52, v48\nv_mov_b32 v53, v49")
a("v_permlane32_swap_b32 v48, v52\nv_permlane32_swap_b32 v49, v53")
cfma(56, vL128, 52, 48, 56)
cfma(58, vPW, 56, 124, 58)
a("s_waitcnt lgkmcnt(0)")
cq = [(1, 1, i) for i in range(8)]
for _ in range(2): cdma(*cq.pop(0))
cur = 58
for t in range(16):
    cfma(vU + 2*t, vLam, cur, vU + 2*t, vU + 2*t)
    cur = vU + 2*t
for m in range(8):
    a(f"v_cvt_pk_bf16_f32 v{32+m}, v{vU+4*m}, v{vU+4*m+2}")
    a(f"v_cvt_pk_bf16_f32 v{40+m}, -v{vU+4*m+1}, -v{vU+4*m+3}")
SCR = 4096
a(f"""
v_and_b32 v20, 31, v{vL}
v_lshrrev_b32 v21, 5, v{vL}
v_lshlrev_b32 v20, 6, v20
v_lshl_add_u32 v20, v21, 5, v20
v_add_u32 v20, s{sLt}, v20
ds_write_b128 v20, v[32:35] offset:{SCR}
ds_write_b128 v20, v[36:39] offset:{SCR+16}
ds_write_b128 v20, v[40:43] offset:{SCR+2048}
ds_write_b128 v20, v[44:47] offset:{SCR+2064}
v_bfe_u32 v22, v{vL}, 2, 2
v_lshl_add_u32 v21, v21, 3, v22
v_lshlrev_b32 v21, 6, v21
v_and_b32 v22, 1, v{vL}
v_lshl_add_u32 v21, v22, 5, v21
v_bfe_u32 v22, v{vL}, 4, 1
v_lshl_add_u32 v21, v22, 4, v21
v_bfe_u32 v22, v{vL}, 1, 1
v_lshl_add_u32 v21, v22, 3, v21
v_add_u32 v21, s{sLt}, v21
s_lshl_b32 s{sT[0]}, s{sMB}, 2
s_add_u32 s{sT[0]}, s{sT[0]}, s{sG}
s_mul_i32 s{sT[0]}, s{sT[0]}, {KS*1024}
s_lshl_b32 s{sT[1]}, s{sJ}, 12
s_add_u32 s{sT[0]}, s{sT[0]}, s{sT[1]}
s_add_u32 s{sT[4]}, s{sT[0]}, {WS_HID + KF*1024}
s_waitcnt lgkmcnt(0)
""")
for f in range(4):
    for u in range(2):
        a(f"ds_read_b64_tr_b16 {vr(48+4*f+2*u,2)}, v21 offset:{SCR + f*1024 + u*256}", ("t", f))
for f in range(4):
    a.wait(lg=("t", f))
    a(f"buffer_store_dwordx4 {vr(48+4*f,4)}, v31, {srd(sWS)}, s{sT[4]} offen offset:{f*1024} sc1", "hid_st")
stamp("hidst")
while cq: cdma(*cq.pop(0))
flag_prep(1, sT[7])
flag_store(sT[7])
stamp("flagst")
hid_voffs()
a(f"""
s_lshl_b32 s{sT[0]}, s{sG}, 2
s_mul_i32 s{sT[4]}, s{sRB}, {2*KS*1024}
s_lshl_b32 s{sT[2]}, s{sG}, 14
s_add_u32 s{sT[4]}, s{sT[4]}, s{sT[2]}
s_add_u32 s{sT[4]}, s{sT[4]}, {WS_HID + KF*1024}
""")
flag_poll(1, 4)
stamp("polled")
def aoffS(n):
    a(f"s_xor_b32 s{sT[9]}, s{sR2S}, {n}\ns_lshl_b32 s{sT[9]}, s{sT[9]}, 10\ns_add_u32 s{sT[9]}, s{sT[9]}, s{sT[4]}")
    return sT[9]
p2_loop(16, 8, 128, breadsS, aoffS)
stamp("p2end")
dump(sE, sLt, 0)
stamp("dumped")
stamp_flush()

a.label("L_final")
a(f"""
v_and_b32 v8, 7, v232
v_xor_b32 v8, v8, v233
v_and_b32 v8, 7, v8
v_lshlrev_b32 v8, 4, v8
v_lshl_add_u32 v8, v232, 7, v8
v_lshrrev_b32 v9, 3, v233
v_lshl_add_u32 v8, v9, 12, v8
v_add_u32 v9, {L_SL}, v8
v_add_u32 v10, {L_SE}, v8
v_add_u32 v12, {2*FLSZ}, v8
v_lshlrev_b32 v11, 11, v236
v_lshl_add_u32 v11, v233, 4, v11
s_lshl_b32 s{sT[0]}, s{sRB}, 17
s_lshl_b32 s{sT[1]}, s{sNB}, 8
s_add_u32 s{sT[0]}, s{sT[0]}, s{sT[1]}
s_add_u32 s{sT[1]}, s{sT[0]}, 0x10000
s_waitcnt vmcnt(0)
""")
a(f"""
v_lshlrev_b32 v140, 16, v246
v_and_b32 v141, s{sMASK}, v246
v_lshlrev_b32 v142, 16, v247
v_and_b32 v143, s{sMASK}, v247
""")
for tb in range(2):
    x, stt, o = 240 + 2*tb, 244 + tb, 128 + 4*tb
    a(f"""
    v_lshlrev_b32 v{o}, 16, v{x}
    v_and_b32 v{o+1}, s{sMASK}, v{x}
    v_lshlrev_b32 v{o+2}, 16, v{x+1}
    v_and_b32 v{o+3}, s{sMASK}, v{x+1}
    v_and_b32 v144, s{sMASK}, v{stt}
    v_lshlrev_b32 v145, 16, v{stt}
    v_rcp_f32 v145, v145
    """)
    for i in range(4): a(f"v_sub_f32 v{148+i}, v{o+i}, v144")
    def rnd():
        a("v_cvt_pk_bf16_f32 v152, v148, v149\nv_cvt_pk_bf16_f32 v153, v150, v151")
        a(f"v_lshlrev_b32 v148, 16, v152\nv_and_b32 v149, s{sMASK}, v152\nv_lshlrev_b32 v150, 16, v153\nv_and_b32 v151, s{sMASK}, v153")
    rnd()
    for i in range(4): a(f"v_mul_f32 v{148+i}, v{148+i}, v145")
    rnd()
    for i in range(4): a(f"v_mul_f32 v{148+i}, v{148+i}, v{140+i}")
    rnd()
    for i in range(4): a(f"v_add_f32 v{o+i}, v{o+i}, v{148+i}")
a("s_waitcnt lgkmcnt(0)\ns_barrier")
stamp("finbar", True)
for tb in range(2):
    for q in range(8):
        if q < 2: base, off = 8, q*FLSZ + tb*8192
        elif q < 4: base, off = 12, (q-2)*FLSZ + tb*8192
        else: base, off = (9 if tb else 10), (q-4)*8192
        a(f"ds_read_b128 {vr(160+32*tb+4*q,4)}, v{base} offset:{off}", ("f", tb, q // 4))
for tb in range(2):
    o = 128 + 4*tb
    for hq in range(2):
        a.wait(lg=("f", tb, hq))
        for q in range(4*hq, 4*hq + 4):
            r = 160 + 32*tb + 4*q
            a(f"v_pk_add_f32 {vr(o,2)}, {vr(o,2)}, {vr(r,2)}\nv_pk_add_f32 {vr(o+2,2)}, {vr(o+2,2)}, {vr(r+2,2)}")
    a(f"buffer_store_dwordx4 {vr(o,4)}, v11, {srd(sOUT)}, s{sT[tb]} offen")
a(f"s_cmp_lg_u32 s2, 0xff\ns_cbranch_scc1 L_noep\ns_cmp_lg_u32 s{sW}, 0\ns_cbranch_scc1 L_noep")
a(f"v_mov_b32 v20, s{sTAG}\nv_mov_b32 v21, 0\ns_mov_b64 exec, 1")
a(f"buffer_store_dword v20, v21, {srd(sWS)}, 0 offen sc1")
a("s_mov_b64 exec, -1")
a.label("L_noep")
if STAMPS:
    stamp("stissued", True)
    a("s_waitcnt vmcnt(0)")
    stamp("end", True)
    a("s_memrealtime s[88:89]\ns_waitcnt lgkmcnt(0)\nv_writelane_b32 v255, s88, 63\nv_writelane_b32 v255, s84, 0\nv_writelane_b32 v255, s86, 1")
    a(f"s_lshl_b32 s{sT[0]}, s2, 3\ns_add_u32 s{sT[0]}, s{sT[0]}, s{sW}\ns_lshl_b32 s{sT[0]}, s{sT[0]}, 8\ns_add_u32 s{sT[0]}, s{sT[0]}, {WS_STAMP}")
    a(f"v_lshlrev_b32 v21, 2, v{vL}\nbuffer_store_dword v255, v21, {srd(sWS)}, s{sT[0]} offen")
    a.raw("; STAMPNAMES " + repr(stamp_names))
if OPT["pad"]:
    a.label("L_pad")
    a(f"s_sleep 4\ns_memrealtime s[8:9]\ns_waitcnt lgkmcnt(0)\ns_sub_u32 s8, s8, s84\ns_cmp_lt_u32 s8, {OPT['pad']}\ns_cbranch_scc1 L_pad")
a.label("L_end")
a("s_endpgm")
a.raw(f""".section .rodata,"a"
.p2align 6
.amdhsa_kernel {NAME}_kernel
  .amdhsa_next_free_vgpr 256
  .amdhsa_next_free_sgpr 102
  .amdhsa_accum_offset 256
  .amdhsa_group_segment_fixed_size 0
  .amdhsa_kernarg_size 120
  .amdhsa_user_sgpr_count 2
  .amdhsa_user_sgpr_kernarg_segment_ptr 1
  .amdhsa_system_sgpr_workgroup_id_x 1
.end_amdhsa_kernel""")
open(sys.argv[1], "w").write(a.text())
print("lines", len(a.lines), "nops", a.nnop, file=sys.stderr)
```

```python
import sys
from asmlib import Asm
NAME = "parallel_sum__ssm_conv_s5__dense_activation_silu__prompt"
OPT = dict(stamps=0, pad=0,
           r_mb=0, r_j=0, r_x0=0, r_x1=0,
           r_sh=0,
           rot2=1,
           tw2=1, ttlb=1, tcode=1,
           wF=3, n1S=6, DA=6, statn=20, fe=2, prio=0, asc1=1, rot2a=1, psleep=0, fsh=7, vpoll=0)
OPT["probe"] = ""
for a_ in sys.argv[2:]:
    k, v = a_.split("="); assert k in OPT, k; OPT[k] = v if k == "probe" else int(v)
STAMPS = OPT["stamps"]

WS_EPOCH = 0
WS_FLAG  = 0xc0000
FSH = OPT['fsh']; FSTR = 512 << FSH
WS_STAT  = 0x4000
WS_EGR   = 0x10000
WS_STAMP = 0x40000
WS_HID   = 0x100000
KS = 152
KF = 88
WS_SIZE  = WS_HID + 64*KS*1024
NST = 3
L_X, L_BW, L_W1 = 0, 49152, 73728
L_FE, L_SE = 110592, 126976
L_CS = 159744
L_FL, FLSZ = 0, 18432
L_SL, SLSZ = 73728, 8192
L_RB  = 106496
L_SEG = L_RB + 512
LDS_BYTES = 163840
sX, sB, sW1, sW2, sC0, sC1, sOUT, sWS = 40, 44, 48, 52, 56, 60, 64, 68
sW, sG, sMB, sJ, sRB, sNB, sTAG, sSB = 72, 73, 74, 75, 76, 77, 78, 98
sMASK, sROT, sR2F, sR2S = 38, 99, 100, 101
sT = [80, 81, 82, 83, 3, 4, 5, 6, 7, 39]
sE, sLt = 34, 35
srd = lambda r: f"s[{r}:{r+3}]"
vr = lambda a, n: f"v[{a}:{a+n-1}]"

a = Asm()
stamp_names = {"F": [], "S": []}
cur_stream = ["F"]
stamp_n = {"F": 0, "S": 0}
def stamp(name, both=False):
    if OPT["probe"] == name: a("s_memrealtime s[88:89]")
    if not STAMPS: return
    st = cur_stream[0]
    k = stamp_n[st]
    if both:
        k = max(stamp_n.values())
        for s_ in stamp_n:
            stamp_names[s_] += ["-"] * (k - stamp_n[s_]) + [name]; stamp_n[s_] = k + 1
        a(f"s_memtime s[88:89]\ns_waitcnt lgkmcnt(0)\nv_writelane_b32 v255, s88, {k+2}")
        return
    stamp_names[st].append(name); stamp_n[st] = k + 1
    r = 90 + 2*(k % 4)
    if k >= 3: a(f"v_writelane_b32 v255, s{90 + 2*((k-3) % 4)}, {k-3+2}")
    a(f"s_memtime s[{r}:{r+1}]")
def stamp_flush():
    if not STAMPS: return
    st = cur_stream[0]; k = stamp_n[st]
    a("s_waitcnt lgkmcnt(0)")
    for i in range(max(0, k-3), k): a(f"v_writelane_b32 v255, s{90 + 2*(i % 4)}, {i+2}")

def mksrd(r, p, size):
    a(f"s_mov_b32 s{r}, s{p}\ns_mov_b32 s{r+1}, s{p+1}\ns_mov_b32 s{r+2}, {hex(size)}\ns_mov_b32 s{r+3}, 0x20000")
def cmul(d, x, y):
    a(f"v_pk_mul_f32 {vr(d,2)}, {vr(x,2)}, {vr(y,2)} op_sel:[0,0] op_sel_hi:[0,1]")
    a(f"v_pk_fma_f32 {vr(d,2)}, {vr(x,2)}, {vr(y,2)}, {vr(d,2)} op_sel:[1,1,0] op_sel_hi:[1,0,1] neg_lo:[1,0,0]")
def cfma(d, x, y, z, t):
    a(f"v_pk_fma_f32 {vr(t,2)}, {vr(x,2)}, {vr(y,2)}, {vr(z,2)} op_sel:[0,0,0] op_sel_hi:[0,1,1]")
    a(f"v_pk_fma_f32 {vr(d,2)}, {vr(x,2)}, {vr(y,2)}, {vr(t,2)} op_sel:[1,1,0] op_sel_hi:[1,0,1] neg_lo:[1,0,0]")
def dpp_sum(v):
    for m in ("row_shr:1","row_shr:2","row_shr:4","row_shr:8"):
        a(f"v_add_f32_dpp v{v}, v{v}, v{v} {m} row_mask:0xf bank_mask:0xf bound_ctrl:0")
    a(f"v_add_f32_dpp v{v}, v{v}, v{v} row_bcast:15 row_mask:0xa bank_mask:0xf")
    a(f"v_add_f32_dpp v{v}, v{v}, v{v} row_bcast:31 row_mask:0xc bank_mask:0xf")
uid = [0]
def newlabel(p):
    uid[0] += 1; return f"L_{p}_{uid[0]}"
SPIN = 0x20000

hdr = open("cdna_kernels/%s.s.ref" % NAME).read().split("; Override")[0]
a.raw(hdr.rstrip())
a.raw(f"; @launch grid=(256,1,1) block=(512,1,1) lds={LDS_BYTES}")
a.raw('.amdgcn_target "amdgcn-amd-amdhsa--gfx950"\n.text\n.globl %s_kernel\n.p2align 8\n.type %s_kernel,@function' % (NAME, NAME))
a.label(NAME + "_kernel")
a("s_cmp_ge_u32 s2, 0x100\ns_cbranch_scc1 L_end")
a("s_load_dwordx16 s[8:23], s[0:1], 0\ns_load_dwordx8 s[24:31], s[0:1], 64\ns_load_dwordx2 s[32:33], s[0:1], 96\ns_load_dwordx2 s[36:37], s[0:1], 112")
if STAMPS or OPT["pad"]:
    a("s_memrealtime s[84:85]\ns_memtime s[86:87]")
vL = 1
vH, vI, vF, vTmp, vTmp2, vTmp3, vTI = 20, 21, 22, 23, 24, 25, 26
vXA, vST, vSTA = 2, 28, 30
vROW = 128
a(f"""
v_lshrrev_b32 v2, 6, v0
v_and_b32 v1, 63, v0
v_readfirstlane_b32 s{sW}, v2
s_and_b32 s{sT[0]}, s2, 7
s_lshr_b32 s{sT[1]}, s2, 3
s_and_b32 s{sT[3]}, s{sT[0]}, 1
s_lshl_b32 s{sMB}, s{sT[3]}, 3
s_and_b32 s{sNB}, s{sT[1]}, 7
s_add_u32 s{sMB}, s{sMB}, s{sNB}
s_lshr_b32 s{sT[4]}, s{sT[0]}, 1
s_lshl_b32 s{sJ}, s{sT[4]}, 2
s_lshr_b32 s{sT[2]}, s{sT[1]}, 3
s_add_u32 s{sJ}, s{sJ}, s{sT[2]}
s_lshl_b32 s{sRB}, s{sT[0]}, 2
s_add_u32 s{sRB}, s{sRB}, s{sT[2]}
""")
a(f"s_mul_i32 s{sROT}, s{sNB}, {OPT['r_mb']}")
for reg, key in ((sT[2], "r_j"), (sT[3], "r_x0"), (sT[4], "r_x1")):
    if OPT[key]: a(f"s_mul_i32 s{sT[5]}, s{reg}, {OPT[key]}\ns_add_u32 s{sROT}, s{sROT}, s{sT[5]}")
if OPT["r_sh"]: a(f"s_lshr_b32 s{sROT}, s{sROT}, {OPT['r_sh']}\ns_lshl_b32 s{sROT}, s{sROT}, {OPT['r_sh']}")
a(f"""
s_and_b32 s{sROT}, s{sROT}, 7
s_mul_i32 s{sSB}, s{sJ}, 3
s_lshl_b32 s{sT[5]}, s{sJ}, 1
s_add_u32 s{sT[5]}, s{sT[5]}, 11
s_min_u32 s{sSB}, s{sSB}, s{sT[5]}
s_and_b32 s{sG}, s{sW}, 3
v_lshrrev_b32 v{vH}, 5, v{vL}
v_lshlrev_b32 v31, 4, v{vL}
v_and_b32 v{vTmp2}, 7, v{vL}
v_lshrrev_b32 v{vTmp3}, 4, v{vL}
v_xor_b32 v27, v{vTmp2}, v{vTmp3}
v_lshlrev_b32 v27, 4, v27
s_lshl_b32 s{sT[0]}, s{sMB}, 7
s_lshl_b32 s{sT[1]}, s{sJ}, 3
s_add_u32 s{sT[0]}, s{sT[0]}, s{sT[1]}
s_add_u32 s{sT[4]}, s{sT[0]}, s{sW}
s_lshl_b32 s{sT[1]}, s{sT[4]}, 10
s_mov_b32 s{sX+2}, 0x200000
s_mov_b32 s{sX+3}, 0x20000
s_cmp_ge_u32 s{sW}, 4
s_cbranch_scc1 L_Spro
""")
st0 = a.fork()

def kchunk(c, dst, base, mul):
    a(f"s_add_u32 s{dst}, s{sROT}, {c}\ns_and_b32 s{dst}, s{dst}, 7\ns_mul_i32 s{dst}, s{dst}, {mul}\ns_add_u32 s{dst}, s{dst}, s{base}")

vWA, vDX = 6, 10
a(f"""
v_bfe_u32 v{vTmp}, v{vL}, 3, 2
v_lshl_add_u32 v{vTmp}, v{vH}, 4, v{vTmp}
v_lshl_add_u32 v{vDX}, v{vTmp}, 10, v27
v_add_u32 v{vDX+2}, 0x1800, v{vDX}
v_xor_b32 v{vDX+1}, 64, v{vDX}
v_add_u32 v{vDX+1}, 0xc00, v{vDX+1}
v_add_u32 v{vDX+3}, 0x1800, v{vDX+1}
s_lshl_b32 s{sT[7]}, s{sMB}, 17
s_lshl_b32 s{sT[0]}, s{sG}, 15
s_add_u32 s{sT[7]}, s{sT[7]}, s{sT[0]}
s_lshl_b32 s{sT[8]}, s{sG}, 12
""")
def dmaF(c):
    def one(i):
        def f():
            if i == 0:
                kchunk(c, sT[9], sT[7], 128)
            a(f"s_add_u32 m0, s{sT[8]}, {L_X + (c % NST)*16384}")
            a(f"buffer_load_dwordx4 v{vDX+i}, {srd(sX)}, s{sT[9]} offen offset:{1024*i} lds", ("c", c))
        return f
    return [one(i) for i in range(4)]
a(f"s_waitcnt lgkmcnt(0)\ns_mov_b32 s{sX}, s8\ns_mov_b32 s{sX+1}, s9")
stamp("kernarg")
a(f"buffer_load_dwordx4 {vr(vROW,4)}, v31, {srd(sX)}, s{sT[1]} offen", "row")
for f in dmaF(0): f()
a("s_branch L_common")
stF0 = a.fork()

a.restore(st0); cur_stream[0] = "S"
a.label("L_Spro")
vBA, vDB, vDW = 6, 10, 12
a(f"""
v_lshrrev_b32 v{vTmp}, 3, v{vL}
v_lshl_add_u32 v{vDB}, v{vTmp}, 10, v27
v_xor_b32 v{vDB+1}, 64, v{vDB}
v_add_u32 v{vDB+1}, 0x1c00, v{vDB+1}
v_lshrrev_b32 v{vTmp}, 2, v{vL}
v_mul_u32_u24 v{vTmp}, 2752, v{vTmp}
v_and_b32 v{vTmp2}, 3, v{vL}
v_lshl_add_u32 v{vDW}, v{vTmp2}, 4, v{vTmp}
s_lshl_b32 s{sT[7]}, s{sJ}, 15
s_and_b32 s{sT[0]}, s{sG}, 1
s_lshl_b32 s{sT[0]}, s{sT[0]}, 14
s_add_u32 s{sT[7]}, s{sT[7]}, s{sT[0]}
s_mul_i32 s{sT[6]}, s{sG}, {16*2752}
s_lshl_b32 s{sT[0]}, s{sSB}, 6
s_add_u32 s{sT[6]}, s{sT[6]}, s{sT[0]}
s_lshl_b32 s{sT[8]}, s{sG}, 11
s_mul_i32 s{sT[2]}, s{sG}, 3072
s_mov_b32 s{sB+2}, 0x80000
s_mov_b32 s{sB+3}, 0x20000
s_mov_b32 s{sW1+2}, {512*1376*2}
s_mov_b32 s{sW1+3}, 0x20000
""")
def dmaS(c):
    def bw(i):
        def f():
            if i == 0: kchunk(c, sT[9], sT[7], 128)
            a(f"s_add_u32 m0, s{sT[8]}, {L_BW + (c % NST)*8192}")
            a(f"buffer_load_dwordx4 v{vDB+i}, {srd(sB)}, s{sT[9]} offen offset:{1024*i} lds", ("c", c))
        return f
    def w1(b):
        def f():
            if b == 0: kchunk(c, sT[9], sT[6], 64*2752)
            a(f"s_add_u32 m0, s{sT[2]}, {L_W1 + (c % NST)*12288 + 960*b}")
            a(f"buffer_load_dwordx4 v{vDW}, {srd(sW1)}, s{sT[9]} offen offset:{64*b} lds", ("c", c))
        return f
    return [w1(0), w1(1), w1(2), bw(0), bw(1)]
a(f"""
s_cmp_ge_u32 s{sG}, 2
s_waitcnt lgkmcnt(0)
s_cselect_b32 s{sB}, s16, s14
s_cselect_b32 s{sB+1}, s17, s15
s_mov_b32 s{sW1}, s28
s_mov_b32 s{sW1+1}, s29
s_mov_b32 s{sX}, s8
s_mov_b32 s{sX+1}, s9
""")
stamp("kernarg")
a(f"buffer_load_dwordx4 {vr(vROW,4)}, v31, {srd(sX)}, s{sT[1]} offen", "row")
for f in dmaS(0): f()
stS0 = a.fork()

a.label("L_common")
a.vm = []
a(f"s_load_dword s{sTAG}, s[36:37], {WS_EPOCH}")
if OPT["tcode"]:
    a("s_getpc_b64 s[0:1]")
    a.raw("L_pcref:")
    a(f"""
    s_and_b32 s{sT[0]}, s2, 0xf8
    s_add_u32 s{sT[0]}, s{sT[0]}, s{sW}
    s_lshl_b32 s{sT[0]}, s{sT[0]}, 7
    s_min_u32 s{sT[0]}, s{sT[0]}, L_end-L_pcref
    v_mov_b32 v{vTmp}, s{sT[0]}
    s_mov_b64 exec, 1
    """)
    a(f"global_load_dword v147, v{vTmp}, s[0:1]", "touch")
    a("s_mov_b64 exec, -1")
mksrd(sW2, 30, 512*1376*2)
mksrd(sOUT, 32, 0x400000)
mksrd(sWS, 36, WS_SIZE)
a(f"""
s_and_b32 s{sT[0]}, s{sRB}, 3
s_lshl_b32 s{sT[0]}, s{sT[0]}, 1
s_mul_i32 s{sT[1]}, s{sNB}, {OPT['rot2a']}
s_add_u32 s{sT[0]}, s{sT[0]}, s{sT[1]}
s_and_b32 s{sT[0]}, s{sT[0]}, 7
s_mul_i32 s{sR2F}, s{sT[0]}, {22*OPT['rot2']}
s_lshr_b32 s{sR2F}, s{sR2F}, 3
""")
a(f"""
s_and_b32 s{sR2S}, s{sT[0]}, 2
s_and_b32 s{sT[1]}, s{sT[0]}, 4
s_lshl_b32 s{sT[1]}, s{sT[1]}, 1
s_or_b32 s{sR2S}, s{sR2S}, s{sT[1]}
s_and_b32 s{sT[1]}, s{sT[0]}, 1
s_lshl_b32 s{sT[1]}, s{sT[1]}, 2
s_or_b32 s{sR2S}, s{sR2S}, s{sT[1]}
s_mul_i32 s{sR2S}, s{sR2S}, {OPT['rot2']}
s_bitcmp1_b32 s{sR2S}, 1
s_cselect_b32 s{sC0}, s20, s18
s_cselect_b32 s{sC0+1}, s21, s19
s_cselect_b32 s{sC1}, s18, s20
s_cselect_b32 s{sC1+1}, s19, s21
s_mov_b32 s{sC0+2}, 0x80000
s_mov_b32 s{sC0+3}, 0x20000
s_mov_b32 s{sC1+2}, 0x80000
s_mov_b32 s{sC1+3}, 0x20000
s_mov_b32 s{sMASK}, 0xffff0000
v_and_b32 v{vI}, 31, v{vL}
v_bfe_u32 v{vF}, v{vL}, 1, 3
s_lshl_b32 s{sT[0]}, s{sG}, 1
v_xor_b32 v{vTmp}, v{vH}, v{vF}
v_xor_b32 v{vTmp}, s{sT[0]}, v{vTmp}
v_lshlrev_b32 v{vTmp}, 4, v{vTmp}
v_lshl_add_u32 v{vTmp}, v{vI}, 7, v{vTmp}
s_lshl_b32 s{sT[0]}, s{sG}, 12
v_add_u32 v{vXA}, s{sT[0]}, v{vTmp}
v_xor_b32 v{vXA+1}, 32, v{vXA}
v_xor_b32 v{vXA+2}, 64, v{vXA}
v_xor_b32 v{vXA+3}, 0x60, v{vXA}
v_bfe_u32 v{vTmp2}, v{vL}, 2, 1
v_bfe_u32 v{vTmp3}, v{vL}, 3, 2
v_and_b32 v{vTI}, 3, v{vL}
v_lshl_add_u32 v{vTI}, v{vTmp2}, 4, v{vTI}
v_lshl_add_u32 v{vTI}, v{vTmp3}, 2, v{vTI}
v_lshlrev_b32 v{vSTA}, 3, v{vTI}
s_lshl_b32 s{sT[5]}, s{sMB}, 10
s_lshl_b32 s{sT[0]}, s{sG}, 8
s_add_u32 s{sT[5]}, s{sT[5]}, s{sT[0]}
s_add_u32 s{sT[5]}, s{sT[5]}, {WS_STAT}
""")
for r in range(14, 20): a(f"v_mov_b32 v{r}, 0")
a("s_barrier")
common_ops = list(a.vm)
a(f"s_cmp_ge_u32 s{sW}, 4\ns_cbranch_scc1 L_S")
stC = a.fork()

def touches(which):
    lab = newlabel("tch")
    if which == "F":
        if OPT["tw2"]:
            a(f"""
            s_lshl_b32 s{sT[0]}, s2, 2
            s_add_u32 s{sT[0]}, s{sT[0]}, s{sG}
            s_mul_i32 s{sT[0]}, s{sT[0]}, {11*128}
            v_lshlrev_b32 v{vTmp}, 7, v{vL}
            s_mov_b64 exec, 0x7ff
            """)
            a(f"buffer_load_dword v148, v{vTmp}, {srd(sW2)}, s{sT[0]} offen", "touch")
            a("s_mov_b64 exec, -1")
        if OPT["ttlb"]:
            a(f"v_lshlrev_b32 v{vTmp}, 20, v{vL}\ns_mov_b64 exec, 0x7ff")
            a(f"buffer_load_dword v149, v{vTmp}, {srd(sWS)}, 0 offen offset:2048 sc1", "touch")
            a("s_mov_b64 exec, 0xf")
            a(f"buffer_load_dword v149, v{vTmp}, {srd(sOUT)}, 0 offen", "touch")
            a("s_mov_b64 exec, -1")
    else:
        if OPT["tw2"]:
            a(f"""
            s_lshl_b32 s{sT[0]}, s2, 2
            s_add_u32 s{sT[0]}, s{sT[0]}, s{sG}
            s_lshl_b32 s{sT[0]}, s{sT[0]}, 9
            v_lshlrev_b32 v{vTmp}, 7, v{vL}
            s_mov_b64 exec, 0xf
            """)
            a(f"buffer_load_dword v148, v{vTmp}, {srd(sC0)}, s{sT[0]} offen", "touch")
            a(f"buffer_load_dword v149, v{vTmp}, {srd(sC1)}, s{sT[0]} offen", "touch")
            a("s_mov_b64 exec, -1")

def stats():
    e = 132
    for i in range(4):
        a(f"v_lshlrev_b32 v{e+2*i}, 16, v{vROW+i}\nv_and_b32 v{e+2*i+1}, s{sMASK}, v{vROW+i}")
    s = 140
    a(f"v_add_f32 v{s}, v{e}, v{e+1}\nv_add_f32 v{s+1}, v{e+2}, v{e+3}\nv_add_f32 v{s+2}, v{e+4}, v{e+5}\nv_add_f32 v{s+3}, v{e+6}, v{e+7}")
    a(f"v_add_f32 v{s}, v{s}, v{s+1}\nv_add_f32 v{s+2}, v{s+2}, v{s+3}\nv_add_f32 v{s}, v{s}, v{s+2}")
    dpp_sum(s)
    a(f"v_readlane_b32 s{sT[0]}, v{s}, 63")
    a(f"v_mov_b32 v{s+1}, 0x3b000000\nv_mul_f32 v{s+1}, s{sT[0]}, v{s+1}")
    for i in range(8): a(f"v_sub_f32 v{e+i}, v{e+i}, v{s+1}")
    a(f"v_mul_f32 v{s}, v{e}, v{e}\nv_mul_f32 v{s+2}, v{e+1}, v{e+1}")
    for i in range(2, 8): a(f"v_fmac_f32 v{s+(i&1)*2}, v{e+i}, v{e+i}")
    a(f"v_add_f32 v{s}, v{s}, v{s+2}")
    dpp_sum(s)
    a(f"""
    v_mul_f32 v{s}, 0x3b000000, v{s}
    v_cvt_pk_bf16_f32 v{s+2}, v{s}, v{s+1}
    v_lshlrev_b32 v{s}, 16, v{s+2}
    v_add_f32 v{s}, 0x3727c5ac, v{s}
    v_cvt_pk_bf16_f32 v{s}, v{s}, v{s}
    v_lshlrev_b32 v{s}, 16, v{s}
    v_sqrt_f32 v{s}, v{s}
    v_cvt_pk_bf16_f32 v{s+4}, v{s}, v{s+1}
    s_waitcnt lgkmcnt(0)
    s_add_u32 s{sTAG}, s{sTAG}, 0x9e3779b9
    s_mov_b32 s{sTAG+1}, s{sTAG}
    v_mov_b32 v{s+5}, s{sTAG}
    s_lshl_b32 s{sT[0]}, s{sT[4]}, 3
    s_add_u32 s{sT[0]}, s{sT[0]}, {WS_STAT}
    v_mov_b32 v{s+6}, 0
    s_mov_b32 exec_lo, 0
    s_mov_b32 exec_hi, 0x80000000
    """)
    a(f"buffer_store_dwordx2 {vr(s+4,2)}, v{s+6}, {srd(sWS)}, s{sT[0]} offen sc1", "stat_st")
    a("s_mov_b64 exec, -1")

def stat_load(tag):
    a(f"buffer_load_dwordx2 {vr(vST,2)}, v{vSTA}, {srd(sWS)}, s{sT[5]} offen sc1", tag)
def stat_check():
    top, done = newlabel("stp"), newlabel("std")
    a(f"s_mov_b32 s{sT[3]}, {SPIN}")
    a.wait(vm="stat_ld")
    a.label(top)
    a(f"v_cmp_ne_u32 vcc, s{sTAG}, v{vST+1}\ns_cmp_eq_u64 vcc, 0\ns_cbranch_scc1 {done}")
    st = a.fork()
    a("s_sleep 2")
    stat_load(None)
    a(f"s_waitcnt vmcnt(0)\ns_sub_u32 s{sT[3]}, s{sT[3]}, 1\ns_cmp_lg_u32 s{sT[3]}, 0\ns_cbranch_scc1 {top}")
    a.label(done)
    a.restore(st)

def colsum_ops(frags, vlo, vhi):
    ops = []
    for n, (r, b) in enumerate(frags):
        t0, t1 = 20 + 2*(n & 1), 21 + 2*(n & 1)
        ops.append(f"v_lshlrev_b32 v{t0}, 16, v{r}")
        ops.append(f"v_and_b32 v{t1}, s{sMASK}, v{r}")
        ops.append(f"v_add_f32 v{vlo+b}, v{vlo+b}, v{t0}")
        ops.append(f"v_add_f32 v{vhi+b}, v{vhi+b}, v{t1}")
    return ops

def p1_loop(nb, reads, mfma, dma, wset, vlo, vhi, extra_dma, hook):
    a.wait(vm=("c", 0)); a("s_barrier")
    stamp("c0")
    reads(0)
    pend_dma = []; pend_cs = []
    for n in range(32):
        c, s = n >> 2, n & 3
        if s == 0:
            pend_dma = dma(c + NST - 1) if c + NST - 1 < 8 else extra_dma(c)
            pend_cs = colsum_ops([(wset(n) + 4*b + i, b) for b in range(nb) for i in range(4)], vlo, vhi)
        if n + 1 < 32:
            if s == 3:
                hook(c)
                a.wait(vm=("c", c + 1), lg=("r", n)); a("s_barrier")
                stamp(f"c{c+1}")
                reads(n + 1)
            else:
                reads(n + 1); a.wait(lg=("r", n))
        else:
            a.wait(lg=("r", n))
        if n == OPT["statn"]: stat_load("stat_ld")
        ncs = (len(pend_cs) + (2 - s)) // (3 - s) if s < 3 else 0
        per = (ncs + nb - 1) // nb
        nd = (len(pend_dma) + (2 - s)) // (3 - s) if s < 3 else 0
        for b in range(nb):
            mfma(n, b)
            if nd > 0 and pend_dma:
                pend_dma.pop(0)(); nd -= 1
            for _ in range(min(per, ncs)):
                a(pend_cs.pop(0)); ncs -= 1
        assert s < 2 or (not pend_cs and not pend_dma), (n, len(pend_cs), len(pend_dma))

def cs_exchange(nb, stream, vlo, vhi):
    for b in range(nb): a(f"v_add_f32 v{vlo+b}, v{vlo+b}, v{vhi+b}")
    for b in range(nb): a(f"v_mov_b32 v{vhi+b}, v{vlo+b}")
    for b in range(nb): a(f"v_permlane32_swap_b32 v{vlo+b}, v{vhi+b}")
    for b in range(nb): a(f"v_add_f32 v{20+b}, v{vlo+b}, v{vhi+b}")
    a(f"""
    v_and_b32 v24, 31, v{vL}
    v_lshlrev_b32 v24, 4, v24
    v_add_u32 v24, {L_CS + stream*2048}, v24
    s_lshl_b32 s{sT[0]}, s{sG}, 9
    v_add_u32 v25, s{sT[0]}, v24
    ds_write_b128 v25, v[20:23]
    """)
def cs_read():
    for g in range(4): a(f"ds_read_b128 {vr(32+4*g,4)}, v24 offset:{512*g}", "cs")
def cs_finish(nb, dst):
    a.wait(lg="cs")
    for b in range(nb):
        a(f"v_add_f32 v{32+b}, v{32+b}, v{36+b}\nv_add_f32 v{40+b}, v{40+b}, v{44+b}")
    for b in range(nb):
        a(f"v_add_f32 v{32+b}, v{32+b}, v{40+b}")
    for b in range(nb):
        a(f"v_and_b32 v{36+b}, s{sMASK}, v{32+b}\nv_sub_f32 v{32+b}, v{32+b}, v{36+b}\nv_cvt_pk_bf16_f32 v{dst+4*b}, v{32+b}, v{36+b}")
def aug_zero(nb, dst, xa):
    for b in range(nb):
        a(f"v_mov_b32 v{dst+4*b+1}, 0\nv_mov_b32 v{dst+4*b+2}, 0\nv_mov_b32 v{dst+4*b+3}, 0")
    a(f"v_mov_b32 v{xa+1}, 0\nv_mov_b32 v{xa+2}, 0\nv_mov_b32 v{xa+3}, 0")
def xaug(dst):
    a(f"""
    v_and_b32 v{dst}, s{sMASK}, v{vST}
    v_cmp_gt_u32 vcc, 32, v{vL}
    v_cvt_pk_bf16_f32 v{dst}, -v{dst}, -v{dst}
    v_cndmask_b32 v{dst}, 0, v{dst}, vcc
    """)

def flag_prep(stream, dst):
    a(f"""
    s_lshl_b32 s{sT[0]}, s{sMB}, 1
    s_lshr_b32 s{sT[1]}, s{sG}, 1
    s_add_u32 s{sT[0]}, s{sT[0]}, s{sT[1]}
    s_lshl_b32 s{sT[0]}, s{sT[0]}, 4
    s_add_u32 s{sT[0]}, s{sT[0]}, s{sJ}
    s_lshl_b32 s{sT[0]}, s{sT[0]}, {FSH}
    s_and_b32 s{sT[1]}, s{sG}, 1
    s_lshl_b32 s{sT[1]}, s{sT[1]}, 2
    s_add_u32 s{sT[0]}, s{sT[0]}, s{sT[1]}
    s_add_u32 s{dst}, s{sT[0]}, {WS_FLAG + stream*FSTR}
    v_mov_b32 v18, s{sTAG}
    v_mov_b32 v19, 0
    """)
def flag_store(src):
    a.wait(vm="hid_st")
    a("s_mov_b64 exec, 1")
    a(f"buffer_store_dword v18, v19, {srd(sWS)}, s{src} offen sc1", "flag_st")
    a("s_mov_b64 exec, -1")
def flag_poll(stream, n):
    top, done, retry = newlabel("fp"), newlabel("fd"), newlabel("fr")
    a(f"""
    s_lshl_b32 s{sT[1]}, s{sRB}, 4
    s_add_u32 s{sT[0]}, s{sT[0]}, s{sT[1]}
    s_lshl_b32 s{sT[0]}, s{sT[0]}, {FSH}
    s_add_u32 s{sT[0]}, s{sT[0]}, {WS_FLAG + stream*FSTR}
    s_add_u32 s20, s36, s{sT[0]}
    s_addc_u32 s21, s37, 0
    s_mov_b32 s{sT[3]}, {SPIN}
    """)
    a.label(top)
    for i in range(n): a(f"s_load_dwordx2 s[{8+2*i}:{9+2*i}], s[20:21], {i << FSH} glc")
    a("s_waitcnt lgkmcnt(0)")
    for i in range(n - 1):
        a(f"s_cmp_lg_u64 s[{8+2*i}:{9+2*i}], s[{sTAG}:{sTAG+1}]\ns_cbranch_scc1 {retry}")
    i = n - 1
    a(f"s_cmp_eq_u64 s[{8+2*i}:{9+2*i}], s[{sTAG}:{sTAG+1}]\ns_cbranch_scc1 {done}")
    a.label(retry)
    if OPT["psleep"]: a(f"s_sleep {OPT['psleep']}")
    a(f"s_sub_u32 s{sT[3]}, s{sT[3]}, 1\ns_cmp_lg_u32 s{sT[3]}, 0\ns_cbranch_scc1 {top}")
    a.label(done)

ACC2, ABUF, DA, BT = 64, 16, OPT["DA"], 216
def p2_loop(nsteps, held, heldreg, breads, aoff):
    def aload(n):
        sg = aoff(n)
        r = ABUF + 8*(n % DA)
        m = " sc1" if OPT["asc1"] else ""
        a(f"buffer_load_dwordx4 {vr(r,4)}, v2, {srd(sWS)}, s{sg} offen{m}", ("a", n))
        a(f"buffer_load_dwordx4 {vr(r+4,4)}, v3, {srd(sWS)}, s{sg} offen{m}", ("a", n))
    for n in range(min(DA, nsteps)): aload(n)
    for n in range(nsteps):
        a.wait(vm=("a", n))
        if held <= n + 1 < nsteps: breads(n + 1, BT + 8*((n + 1) & 1))
        if n >= held: a.wait(lg=("b", n))
        w = heldreg + 8*n if n < held else BT + 8*(n & 1)
        r = ABUF + 8*(n % DA)
        for tb in range(2):
            for db in range(2):
                acc = ACC2 + 16*(2*db + tb)
                c = "0" if n == 0 else vr(acc, 16)
                a(f"v_mfma_f32_32x32x16_bf16 {vr(acc,16)}, {vr(w+4*db,4)}, {vr(r+4*tb,4)}, {c}")
        if n in (0, 5, 10, 15): stamp(f'a{n}')
        if n + DA < nsteps: aload(n + DA)
        if n + DA == nsteps: resid_load()

def hid_voffs():
    a(f"v_lshlrev_b32 v2, 4, v{vL}\nv_add_u32 v3, {KS*1024}, v2")

def resid_load():
    a(f"""
    v_lshrrev_b32 v232, 4, v0
    v_and_b32 v233, 15, v0
    v_bfe_u32 v234, v232, 2, 1
    v_lshrrev_b32 v235, 3, v232
    v_and_b32 v236, 3, v232
    v_lshl_add_u32 v236, v234, 4, v236
    v_lshl_add_u32 v236, v235, 2, v236
    v_lshlrev_b32 v234, 10, v236
    v_lshl_add_u32 v234, v233, 3, v234
    v_lshlrev_b32 v235, 3, v236
    s_lshl_b32 s{sT[0]}, s{sRB}, 16
    s_lshl_b32 s{sT[1]}, s{sNB}, 7
    s_add_u32 s{sT[0]}, s{sT[0]}, s{sT[1]}
    s_add_u32 s{sT[2]}, s{sT[0]}, 0x8000
    """)
    a(f"buffer_load_dwordx2 v[240:241], v234, {srd(sX)}, s{sT[0]} offen", "res")
    a(f"buffer_load_dwordx2 v[242:243], v234, {srd(sX)}, s{sT[2]} offen", "res")
    a(f"s_lshl_b32 s{sT[0]}, s{sRB}, 9\ns_add_u32 s{sT[0]}, s{sT[0]}, {WS_STAT}")
    a(f"buffer_load_dword v244, v235, {srd(sWS)}, s{sT[0]} offen sc1", "res")
    a(f"buffer_load_dword v245, v235, {srd(sWS)}, s{sT[0]} offen offset:256 sc1", "res")
    a(f"v_lshlrev_b32 v237, 3, v233\nv_add_u32 v237, s{sT[1]}, v237")
    a(f"global_load_dwordx2 v[246:247], v237, s[24:25]", "res")

def dump(b0, b1, off1):
    a(f"""
    v_and_b32 v4, 31, v{vL}
    v_lshrrev_b32 v5, 5, v{vL}
    v_and_b32 v6, 7, v{vL}
    v_xor_b32 v5, v5, v6
    v_lshlrev_b32 v5, 4, v5
    v_lshl_add_u32 v12, v4, 7, v5
    v_add_u32 v4, s{b0}, v12
    v_xor_b32 v5, 32, v4
    v_xor_b32 v6, 64, v4
    v_xor_b32 v7, 0x60, v4
    v_add_u32 v8, s{b1}, v12
    v_xor_b32 v9, 32, v8
    v_xor_b32 v10, 64, v8
    v_xor_b32 v11, 0x60, v8
    """)
    for tb in range(2):
        for db in range(2):
            for g in range(4):
                a(f"ds_write_b128 v{4+4*tb+g}, {vr(ACC2+16*(2*db+tb)+4*g,4)} offset:{tb*off1+db*4096}")

cur_stream[0] = "F"
a.restore(stC); a.vm = stF0[1] + common_ops
for f in dmaF(1): f()
touches("F")
a(f"""
v_bfe_u32 v{vTmp}, v{vL}, 2, 2
v_lshl_add_u32 v{vTmp}, v{vH}, 3, v{vTmp}
v_lshlrev_b32 v{vTmp}, 6, v{vTmp}
v_bfe_u32 v{vTmp2}, v{vL}, 4, 1
v_lshl_add_u32 v{vTmp}, v{vTmp2}, 5, v{vTmp}
v_and_b32 v{vTmp2}, 1, v{vL}
v_lshl_add_u32 v{vTmp}, v{vTmp2}, 4, v{vTmp}
v_bfe_u32 v{vTmp2}, v{vL}, 1, 1
v_lshl_add_u32 v{vTmp}, v{vTmp2}, 3, v{vTmp}
""")
for s in range(4):
    a(f"s_xor_b32 s{sT[0]}, s{sG}, {s}\ns_mul_i32 s{sT[0]}, s{sT[0]}, 3072\ns_add_u32 s{sT[0]}, s{sT[0]}, {L_W1}\nv_add_u32 v{vWA+s}, s{sT[0]}, v{vTmp}")
a(f"""
v_lshrrev_b32 v248, 3, v{vL}
v_and_b32 v{vTmp}, 7, v{vL}
v_bfe_u32 v{vTmp2}, v{vL}, 4, 1
v_lshlrev_b32 v{vTmp2}, 2, v{vTmp2}
v_xor_b32 v{vTmp}, v{vTmp}, v{vTmp2}
v_lshlrev_b32 v{vTmp}, 4, v{vTmp}
v_lshl_add_u32 v248, v248, 10, v{vTmp}
v_add_u32 v253, 0x1c00, v248
v_bfe_u32 v{vTmp}, v{vL}, 2, 2
v_lshl_add_u32 v249, v{vH}, 3, v{vTmp}
v_lshlrev_b32 v249, 7, v249
v_bfe_u32 v{vTmp}, v{vL}, 3, 1
v_lshl_add_u32 v249, v{vTmp}, 6, v249
v_bfe_u32 v{vTmp}, v{vL}, 4, 1
v_lshl_add_u32 v249, v{vTmp}, 5, v249
v_and_b32 v{vTmp}, 3, v{vL}
v_lshl_add_u32 v249, v{vTmp}, 3, v249
s_lshl_b32 s{sE}, s{sG}, 12
s_add_u32 s{sE}, s{sE}, {L_FE}
s_mul_i32 s{sLt}, s{sG}, {FLSZ}
v_add_u32 v251, s{sLt}, v249
v_add_u32 v249, s{sE}, v249
v_xor_b32 v250, 64, v249
v_xor_b32 v252, 64, v251
s_mul_i32 s{sT[6]}, s{sG}, {352*1024}
s_lshl_b32 s{sT[0]}, s{sNB}, 7
s_add_u32 s{sT[6]}, s{sT[6]}, s{sT[0]}
""")
def rotF(n, dst, base, mul):
    a(f"s_add_u32 s{dst}, s{sR2F}, {n}\ns_cmp_ge_u32 s{dst}, 22\ns_cselect_b32 s{sT[1]}, 22, 0\ns_sub_u32 s{dst}, s{dst}, s{sT[1]}\ns_mul_i32 s{dst}, s{dst}, {mul}\ns_add_u32 s{dst}, s{dst}, s{base}")
def w2half(n, i):
    slot = n % 11
    if i == 0: rotF(n, sT[2], sT[6], 16384)
    if slot < 2: a(f"s_add_u32 m0, s{sE}, {slot*2048}")
    else: a(f"s_add_u32 m0, s{sLt}, {(slot-2)*2048}")
    a(f"buffer_load_dwordx4 v{253 if i else 248}, {srd(sW2)}, s{sT[2]} offen offset:{1024*i} lds", ("w", n))
def w2step(n): w2half(n, 0); w2half(n, 1)
def breadsF(n, dst):
    slot = n % 11
    for db in range(2):
        for u in range(2):
            va, off = (249 + db, slot*2048) if slot < 2 else (251 + db, (slot-2)*2048)
            a(f"ds_read_b64_tr_b16 {vr(dst+4*db+2*u,2)}, v{va} offset:{off + u*512}", ("b", n))
a.wait(vm="row")
stamp("row")
stats()
stamp("stats")
ACC1 = 80
wsetF = lambda n: (40, 52, 64, 52)[n & 3]
def readsF(n):
    c, s = n >> 2, n & 3
    a(f"ds_read_b128 {vr(32+4*(n&1),4)}, v{vXA+s} offset:{(c % NST)*16384}", ("r", n))
    for b in range(3):
        for u in range(2):
            a(f"ds_read_b64_tr_b16 {vr(wsetF(n)+4*b+2*u,2)}, v{vWA+s} offset:{(c % NST)*12288+b*1024+u*256}", ("r", n))
def mfmaF(n, b):
    acc = vr(ACC1+16*b, 16)
    a(f"v_mfma_f32_32x32x16_bf16 {acc}, {vr(wsetF(n)+4*b,4)}, {vr(32+4*(n&1),4)}, {'0' if n == 0 else acc}")
def extraF(c):
    n = c - 6
    return [lambda: w2half(n, 0), lambda: w2half(n, 1)]
p1_loop(3, readsF, mfmaF, dmaF, wsetF, 14, 17, extraF, lambda c: None)
stamp("p1end")
cs_exchange(3, 0, 14, 17)
stat_check()
aug_zero(3, 64, 48)
xaug(48)
a("s_waitcnt lgkmcnt(0)\ns_barrier")
stamp("B1")
cs_read()
wq = list(range(2, 11))
for _ in range(OPT["fe"]): w2step(wq.pop(0))
a(f"""
v_lshlrev_b32 v54, 16, v{vST}
v_rcp_f32 v52, v54
v_mul_f32 v52, 0xbfb8aa3b, v52
s_lshl_b32 s{sT[0]}, s{sMB}, 2
s_add_u32 s{sT[0]}, s{sT[0]}, s{sG}
s_mul_i32 s{sT[0]}, s{sT[0]}, {KS*1024}
s_lshl_b32 s{sT[1]}, s{sSB}, 11
s_add_u32 s{sT[0]}, s{sT[0]}, s{sT[1]}
s_add_u32 s{sT[4]}, s{sT[0]}, {WS_HID}
s_add_u32 s{sT[5]}, s{sT[4]}, 4096
s_sub_u32 s{sT[0]}, s{sJ}, 11
s_cmp_lt_u32 s{sT[0]}, 4
s_cselect_b32 s{sT[0]}, 0x7ff00000, 0
v_add_u32 v5, s{sT[0]}, v31
""")
cs_finish(3, 64)
for b in range(3):
    acc = vr(ACC1+16*b, 16)
    a(f"v_mfma_f32_32x32x16_bf16 {acc}, {vr(64+4*b,4)}, v[48:51], {acc}")
flag_prep(0, sT[7])
halfq = []
for b in range(3):
    A = ACC1 + 16*b
    for f in range(2):
        z = 32 + 8*f
        o = 56 + 4*((2*b+f) & 1)
        for m in range(4):
            a(f"v_pk_mul_f32 {vr(z+2*m,2)}, {vr(A+8*f+2*m,2)}, v[52:53] op_sel_hi:[1,0]")
        for m in range(8): a(f"v_exp_f32 v{z+m}, v{z+m}")
        for m in range(4):
            a(f"v_pk_fma_f32 {vr(z+2*m,2)}, {vr(z+2*m,2)}, v[54:55], v[54:55] op_sel_hi:[1,0,0]")
        for m in range(8): a(f"v_rcp_f32 v{z+m}, v{z+m}")
        for m in range(4):
            a(f"v_pk_mul_f32 {vr(z+2*m,2)}, {vr(z+2*m,2)}, {vr(A+8*f+2*m,2)}")
        for m in range(4):
            a(f"v_cvt_pk_bf16_f32 v{o+m}, v{z+2*m}, v{z+2*m+1}")
        sg, imm = (sT[4], b*2048 + f*1024) if b < 2 else (sT[5], f*1024)
        a(f"buffer_store_dwordx4 {vr(o,4)}, v{31 if b < 2 else 5}, {srd(sWS)}, s{sg} offen offset:{imm} sc1", "hid_st")
        if wq and not (b == 2 and f == 1):
            w2half(wq[0], f)
            if f == 1: wq.pop(0)
            elif b == 2: halfq.append(wq.pop(0))
    if b == 0: stamp("blk0"); a("s_barrier"); stamp("B2")
stamp("epi_done")
for n in halfq: w2half(n, 1)
W = OPT["wF"]
flagged = False
drained = 0
seq = wq + list(range(11, 22))
issued = [n for n in range(0, 11) if n not in wq]
for m in seq:
    if len(issued) >= W: a.wait(vm=("w", issued[-W]))
    if not flagged and "hid_st" not in a.vm:
        flag_store(sT[7]); flagged = True; stamp("flagst")
    if m >= 11:
        a.wait(vm=("w", m - 11))
        breadsF(m - 11, 128 + 8*(m - 11)); a.wait(lg=("b", m - 11))
    w2step(m); issued.append(m)
    if m in (9, 12, 15, 18): stamp(f'w{m}')
assert flagged
stamp("w2issued")
hid_voffs()
a(f"""
s_mul_i32 s{sT[0]}, s{sG}, 3
s_cmp_eq_u32 s{sG}, 3
s_cselect_b32 s{sT[0]}, 11, s{sT[0]}
s_mul_i32 s{sT[4]}, s{sRB}, {2*KS*1024}
s_mul_i32 s{sT[2]}, s{sG}, {22*1024}
s_add_u32 s{sT[4]}, s{sT[4]}, s{sT[2]}
s_add_u32 s{sT[4]}, s{sT[4]}, {WS_HID}
""")
flag_poll(0, 5)
stamp("polled")
def aoffF(n):
    rotF(n, sT[9], sT[4], 1024); return sT[9]
p2_loop(22, 11, 128, breadsF, aoffF)
stamp("p2end")
dump(sLt, sLt, 8192)
stamp("dumped")
stamp_flush()
a("s_branch L_final")

cur_stream[0] = "S"
a.restore(stC); a.vm = stS0[1] + common_ops
a.raw(".p2align 6")
a.label("L_S")
for f in dmaS(1): f()
a(f"s_lshl_b32 s{sT[0]}, s{sJ}, 6\nv_lshl_add_u32 v{vTmp}, v{vI}, 1, s{sT[0]}")
a(f"global_load_ushort v150, v{vTmp}, s[10:11]", "par")
a(f"global_load_ushort v151, v{vTmp}, s[12:13]", "par")
a(f"global_load_ushort v152, v{vTmp}, s[22:23]", "par")
touches("S")
a(f"s_lshl_b32 s{sT[0]}, s{sG}, 12\ns_sub_u32 s{sT[0]}, {L_BW}, s{sT[0]}")
for s in range(4): a(f"v_add_u32 v{vBA+s}, s{sT[0]}, v{vXA+s}")
a(f"""
v_lshrrev_b32 v248, 3, v{vL}
v_lshl_add_u32 v248, v248, 10, v27
v_xor_b32 v249, 64, v248
s_lshl_b32 s{sE}, s{sG}, 13
s_add_u32 s{sLt}, s{sE}, {L_SL}
s_add_u32 s{sE}, s{sE}, {L_SE}
s_lshr_b32 s{sT[0]}, s{sR2S}, 2
s_and_b32 s{sT[0]}, s{sT[0]}, 1
s_lshl_b32 s{sT[0]}, s{sT[0]}, 2
v_xor_b32 v{vTmp}, v{vH}, v{vF}
v_xor_b32 v{vTmp}, s{sT[0]}, v{vTmp}
v_lshlrev_b32 v{vTmp}, 4, v{vTmp}
v_lshl_add_u32 v{vTmp}, v{vI}, 7, v{vTmp}
v_add_u32 v250, s{sE}, v{vTmp}
v_xor_b32 v251, 32, v250
v_xor_b32 v252, 64, v250
v_xor_b32 v253, 0x60, v250
v_add_u32 v232, s{sLt}, v{vTmp}
v_xor_b32 v233, 32, v232
v_xor_b32 v234, 64, v232
v_xor_b32 v235, 0x60, v232
s_lshl_b32 s0, s{sNB}, 16
s_lshl_b32 s{sT[0]}, s{sG}, 8
s_add_u32 s0, s0, s{sT[0]}
s_lshr_b32 s{sT[0]}, s{sR2S}, 3
s_lshl_b32 s{sT[0]}, s{sT[0]}, 7
s_add_u32 s0, s0, s{sT[0]}
s_xor_b32 s1, s0, 128
""")
def cdma(r, part, i):
    a(f"s_add_u32 m0, s{sLt if part else sE}, {i*1024}\ns_add_u32 s{sT[1]}, s{r}, {i*8192}")
    a(f"buffer_load_dwordx4 v{248+(i&1)}, {srd(sC1 if part else sC0)}, s{sT[1]} offen lds", ("w", r, part))
def breadsS(n, dst):
    jl, part, half = (n >> 2) & 1, (n >> 1) & 1, n & 1
    for db in range(2):
        a(f"ds_read_b128 {vr(dst+4*db,4)}, v{(6 if part else 250)+2*jl+half} offset:{db*4096}", ("b", n))
a.wait(vm="row")
stamp("row")
stats()
stamp("stats")
vLam, vK, vL16, vL128, vL256, vPW = 112, 114, 116, 118, 120, 122
def params():
    a.wait(vm="par")
    a(f"""
    v_lshlrev_b32 v150, 16, v150
    v_lshlrev_b32 v151, 16, v151
    v_lshlrev_b32 v152, 16, v152
    v_mul_f32 v152, 0x3fb8aa3b, v152
    v_exp_f32 v152, v152
    v_cvt_pk_bf16_f32 v152, v152, v152
    v_lshlrev_b32 v152, 16, v152
    v_mul_f32 v153, v152, v150
    v_mul_f32 v154, v152, v151
    v_mul_f32 v153, 0x3fb8aa3b, v153
    v_exp_f32 v153, v153
    v_mul_f32 v154, 0.15915494, v154
    v_rndne_f32 v155, v154
    v_sub_f32 v154, v154, v155
    v_cos_f32 v155, v154
    v_sin_f32 v156, v154
    v_mul_f32 v{vLam}, v153, v155
    v_mul_f32 v{vLam+1}, v153, v156
    v_add_f32 v153, -1.0, v{vLam}
    v_mul_f32 v154, v150, v150
    v_fmac_f32 v154, v151, v151
    v_rcp_f32 v154, v154
    v_mul_f32 v155, v153, v150
    v_fmac_f32 v155, v{vLam+1}, v151
    v_mul_f32 v156, v{vLam+1}, v150
    v_fma_f32 v156, -v153, v151, v156
    v_add_f32 v154, v154, v154
    v_mul_f32 v{vK}, v155, v154
    v_mul_f32 v{vK+1}, v156, v154
    """)
    cmul(150, vLam, vLam); cmul(152, 150, 150); cmul(150, 152, 152); cmul(vL16, 150, 150)
    cmul(150, vL16, vL16); cmul(152, 150, 150)
    cmul(vL128, 152, 152); cmul(vL256, vL128, vL128)
    a(f"""
    v_cmp_gt_u32 vcc, 32, v{vL}
    v_cndmask_b32 v154, v{vL16}, 1.0, vcc
    v_cndmask_b32 v155, v{vL16+1}, 0, vcc
    s_bitcmp1_b32 s{sG}, 0
    s_cselect_b64 vcc, -1, 0
    v_cndmask_b32 v150, 1.0, v150, vcc
    v_cndmask_b32 v151, 0, v151, vcc
    s_bitcmp1_b32 s{sG}, 1
    s_cselect_b64 vcc, -1, 0
    v_cndmask_b32 v152, 1.0, v152, vcc
    v_cndmask_b32 v153, 0, v153, vcc
    """)
    cmul(156, 154, 150); cmul(vPW, 156, 152)
    a(f"""
    v_lshrrev_b32 v244, 5, v{vL}
    v_sub_u32 v244, s{sMB}, v244
    v_subrev_u32 v244, 1, v244
    v_and_b32 v150, 31, v{vL}
    v_lshlrev_b32 v150, 4, v150
    v_lshl_add_u32 v150, v244, 13, v150
    v_mov_b32 v151, 0x7ff00000
    """)
    for i in range(8):
        a(f"v_subrev_u32 v{236+i}, {i*16384}, v150")
        a(f"v_cmp_le_i32 vcc, {2*i}, v244\nv_cndmask_b32 v{236+i}, v151, v{236+i}, vcc")
wsetS = lambda n: (40, 52, 64, 52)[n & 3]
def readsS(n):
    c, s = n >> 2, n & 3
    a(f"ds_read_b128 {vr(32+4*(n&1),4)}, v{vXA+s} offset:{(c % NST)*16384}", ("r", n))
    for b in range(2):
        a(f"ds_read_b128 {vr(wsetS(n)+4*b,4)}, v{vBA+s} offset:{(c % NST)*8192+b*4096}", ("r", n))
def mfmaS(n, b):
    acc = vr(ACC1+16*b, 16)
    a(f"v_mfma_f32_32x32x16_bf16 {acc}, {vr(32+4*(n&1),4)}, {vr(wsetS(n)+4*b,4)}, {'0' if n == 0 else acc}")
def extraS(c):
    return [(lambda i=i: cdma(0, 0, i)) for i in range(4*(c-6), 4*(c-6)+4)]
p1_loop(2, readsS, mfmaS, dmaS, wsetS, 14, 17, extraS, lambda c: params() if c == 1 else None)
stamp("p1end")
if OPT["prio"]: a("s_setprio 2")
cs_exchange(2, 1, 14, 17)
stat_check()
aug_zero(2, 64, 48)
xaug(48)
a(f"""
v_lshlrev_b32 v60, 16, v{vST}
v_rcp_f32 v60, v60
s_lshl_b32 s{sT[0]}, s{sG}, 7
s_add_u32 s{sT[0]}, s{sT[0]}, {L_RB}
v_lshl_add_u32 v61, v{vTI}, 2, s{sT[0]}
v_lshrrev_b32 v62, 5, v{vL}
v_lshl_add_u32 v62, v62, 6, s{sT[0]}
v_mov_b32 v6, v232
v_mov_b32 v7, v233
v_mov_b32 v8, v234
v_mov_b32 v9, v235
""")
a("s_waitcnt lgkmcnt(0)\ns_barrier")
stamp("B1")
cs_read()
a("ds_write_b32 v61, v60", "rw")
cq = [(0, 1, i) for i in range(8)]
for _ in range(2): cdma(*cq.pop(0))
cs_finish(2, 64)
for b in range(2):
    acc = vr(ACC1+16*b, 16)
    a(f"v_mfma_f32_32x32x16_bf16 {acc}, v[48:51], {vr(64+4*b,4)}, {acc}")
a.wait(lg="rw")
vR, vU = 32, 192
for q in range(4): a(f"ds_read_b128 {vr(vR+4*q,4)}, v62 offset:{16*q}", "rr")
a(f"""
v_and_b32 v54, 31, v{vL}
v_lshlrev_b32 v54, 3, v54
v_add_u32 v54, {L_SEG}, v54
s_lshl_b32 s{sT[0]}, s{sG}, 9
v_lshl_add_u32 v55, v{vL}, 3, s{sT[0]}
v_add_u32 v55, {L_SEG}, v55
v_mov_b32 v74, s{sTAG}
v_mov_b32 v75, s{sTAG}
s_cmp_eq_u32 s{sG}, 0
s_cselect_b32 s{sT[1]}, 0, 0x7ff00000
v_add_u32 v76, s{sT[1]}, v31
""")
for t in range(16):
    e, o = t & ~1, t & 1
    a(f"v_pk_mul_f32 {vr(vU+2*t,2)}, {vr(vK,2)}, {vr(ACC1+e,2)} op_sel:[0,{o}] op_sel_hi:[1,{o}]")
    a(f"v_pk_fma_f32 {vr(vU+2*t,2)}, {vr(vK,2)}, {vr(ACC1+16+e,2)}, {vr(vU+2*t,2)} op_sel:[1,{o},0] op_sel_hi:[0,{o},1] neg_lo:[1,0,0]")
a.wait(lg="rr")
for t in range(16):
    e, o = t & ~1, t & 1
    a(f"v_pk_mul_f32 {vr(vU+2*t,2)}, {vr(vU+2*t,2)}, {vr(vR+e,2)} op_sel:[0,{o}] op_sel_hi:[1,{o}]")
cur = vU
for t in range(1, 16):
    d = 48 + 2*(t & 1)
    cfma(d, vLam, cur, vU + 2*t, 52)
    cur = d
a(f"ds_write_b64 v55, {vr(cur,2)}\ns_waitcnt lgkmcnt(0)")
stamp("pass1")
a("s_barrier")
for sgi in range(8): a(f"ds_read_b64 {vr(56+2*sgi,2)}, v54 offset:{256*sgi}", "seg")
a(f"""
s_lshl_b32 s{sT[0]}, s{sG}, 1
v_lshrrev_b32 v53, 5, v{vL}
v_add_u32 v53, s{sT[0]}, v53
v_mov_b32 v124, 0
v_mov_b32 v125, 0
s_lshl_b32 s{sT[0]}, s{sMB}, 13
s_lshl_b32 s{sT[1]}, s{sJ}, 9
s_add_u32 s{sT[4]}, s{sT[1]}, {WS_EGR}
s_add_u32 s{sT[0]}, s{sT[0]}, s{sT[4]}
""")
a.wait(lg="seg")
cur = 56
for jx in range(1, 8):
    d = 32 + 2*jx if jx < 7 else 72
    cfma(d, vL16, cur, 56 + 2*jx, 56 + 2*jx)
    cur = d
a("s_mov_b32 exec_hi, 0")
a(f"buffer_store_dwordx4 v[72:75], v76, {srd(sWS)}, s{sT[0]} offen sc1", "e_st")
a("s_mov_b64 exec, -1")
stamp("Epub")
for jx in range(1, 8):
    src = 56 if jx == 1 else 32 + 2*(jx-1)
    a(f"v_cmp_eq_u32 vcc, {jx}, v53\nv_cndmask_b32 v124, v124, v{src}, vcc\nv_cndmask_b32 v125, v125, v{src+1}, vcc")
while cq: cdma(*cq.pop(0))
a.wait(vm=("w", 0, 0))
for n in (0, 1, 4, 5): breadsS(n, 128 + 8*n)
a("s_waitcnt lgkmcnt(0)")
cq = [(1, 0, i) for i in range(8)]
for _ in range(OPT["n1S"]):
    a(f"s_waitcnt vmcnt(5)")
    cdma(*cq.pop(0))
stamp("lbissue")
top, done = newlabel("lb"), newlabel("lbd")
a(f"s_mov_b32 s{sT[3]}, {SPIN}")
a.label(top)
for i in range(8):
    a(f"buffer_load_dwordx4 {vr(48+4*i,4)}, v{236+i}, {srd(sWS)}, s{sT[4]} offen sc1")
a("s_waitcnt vmcnt(0)\ns_mov_b64 s[32:33], 0")
for i in range(8):
    a(f"v_cmp_ne_u32 vcc, s{sTAG}, v{48+4*i+2}\nv_cmp_le_i32 s[8:9], {2*i}, v244\ns_and_b64 vcc, vcc, s[8:9]\ns_or_b64 s[32:33], s[32:33], vcc")
a(f"s_cbranch_scc0 {done}")
a(f"s_sleep 1\ns_sub_u32 s{sT[3]}, s{sT[3]}, 1\ns_cmp_lg_u32 s{sT[3]}, 0\ns_cbranch_scc1 {top}")
a.label(done)
stamp("lookback")
for n in (2, 3, 6, 7): breadsS(n, 128 + 8*n)
while cq: cdma(*cq.pop(0))
cur = 48 + 4*7
for i in range(6, -1, -1):
    cfma(48 + 4*i, vL256, cur, 48 + 4*i, 48 + 4*i)
    cur = 48 + 4*i
a("v_mov_b32 v52, v48\nv_mov_b32 v53, v49")
a("v_permlane32_swap_b32 v48, v52\nv_permlane32_swap_b32 v49, v53")
cfma(56, vL128, 52, 48, 56)
cfma(58, vPW, 56, 124, 58)
a("s_waitcnt lgkmcnt(0)")
cq = [(1, 1, i) for i in range(8)]
for _ in range(2): cdma(*cq.pop(0))
cur = 58
for t in range(16):
    cfma(vU + 2*t, vLam, cur, vU + 2*t, vU + 2*t)
    cur = vU + 2*t
for m in range(8):
    a(f"v_cvt_pk_bf16_f32 v{32+m}, v{vU+4*m}, v{vU+4*m+2}")
    a(f"v_cvt_pk_bf16_f32 v{40+m}, -v{vU+4*m+1}, -v{vU+4*m+3}")
SCR = 4096
a(f"""
v_and_b32 v20, 31, v{vL}
v_lshrrev_b32 v21, 5, v{vL}
v_lshlrev_b32 v20, 6, v20
v_lshl_add_u32 v20, v21, 5, v20
v_add_u32 v20, s{sLt}, v20
ds_write_b128 v20, v[32:35] offset:{SCR}
ds_write_b128 v20, v[36:39] offset:{SCR+16}
ds_write_b128 v20, v[40:43] offset:{SCR+2048}
ds_write_b128 v20, v[44:47] offset:{SCR+2064}
v_bfe_u32 v22, v{vL}, 2, 2
v_lshl_add_u32 v21, v21, 3, v22
v_lshlrev_b32 v21, 6, v21
v_and_b32 v22, 1, v{vL}
v_lshl_add_u32 v21, v22, 5, v21
v_bfe_u32 v22, v{vL}, 4, 1
v_lshl_add_u32 v21, v22, 4, v21
v_bfe_u32 v22, v{vL}, 1, 1
v_lshl_add_u32 v21, v22, 3, v21
v_add_u32 v21, s{sLt}, v21
s_lshl_b32 s{sT[0]}, s{sMB}, 2
s_add_u32 s{sT[0]}, s{sT[0]}, s{sG}
s_mul_i32 s{sT[0]}, s{sT[0]}, {KS*1024}
s_lshl_b32 s{sT[1]}, s{sJ}, 12
s_add_u32 s{sT[0]}, s{sT[0]}, s{sT[1]}
s_add_u32 s{sT[4]}, s{sT[0]}, {WS_HID + KF*1024}
s_waitcnt lgkmcnt(0)
""")
for f in range(4):
    for u in range(2):
        a(f"ds_read_b64_tr_b16 {vr(48+4*f+2*u,2)}, v21 offset:{SCR + f*1024 + u*256}", ("t", f))
for f in range(4):
    a.wait(lg=("t", f))
    a(f"buffer_store_dwordx4 {vr(48+4*f,4)}, v31, {srd(sWS)}, s{sT[4]} offen offset:{f*1024} sc1", "hid_st")
stamp("hidst")
while cq: cdma(*cq.pop(0))
flag_prep(1, sT[7])
flag_store(sT[7])
stamp("flagst")
hid_voffs()
a(f"""
s_lshl_b32 s{sT[0]}, s{sG}, 2
s_mul_i32 s{sT[4]}, s{sRB}, {2*KS*1024}
s_lshl_b32 s{sT[2]}, s{sG}, 14
s_add_u32 s{sT[4]}, s{sT[4]}, s{sT[2]}
s_add_u32 s{sT[4]}, s{sT[4]}, {WS_HID + KF*1024}
""")
flag_poll(1, 4)
stamp("polled")
def aoffS(n):
    a(f"s_xor_b32 s{sT[9]}, s{sR2S}, {n}\ns_lshl_b32 s{sT[9]}, s{sT[9]}, 10\ns_add_u32 s{sT[9]}, s{sT[9]}, s{sT[4]}")
    return sT[9]
p2_loop(16, 8, 128, breadsS, aoffS)
stamp("p2end")
dump(sE, sLt, 0)
stamp("dumped")
stamp_flush()

a.label("L_final")
a(f"""
v_and_b32 v8, 7, v232
v_xor_b32 v8, v8, v233
v_and_b32 v8, 7, v8
v_lshlrev_b32 v8, 4, v8
v_lshl_add_u32 v8, v232, 7, v8
v_lshrrev_b32 v9, 3, v233
v_lshl_add_u32 v8, v9, 12, v8
v_add_u32 v9, {L_SL}, v8
v_add_u32 v10, {L_SE}, v8
v_add_u32 v12, {2*FLSZ}, v8
v_lshlrev_b32 v11, 11, v236
v_lshl_add_u32 v11, v233, 4, v11
s_lshl_b32 s{sT[0]}, s{sRB}, 17
s_lshl_b32 s{sT[1]}, s{sNB}, 8
s_add_u32 s{sT[0]}, s{sT[0]}, s{sT[1]}
s_add_u32 s{sT[1]}, s{sT[0]}, 0x10000
s_waitcnt vmcnt(0)
""")
a(f"""
v_lshlrev_b32 v140, 16, v246
v_and_b32 v141, s{sMASK}, v246
v_lshlrev_b32 v142, 16, v247
v_and_b32 v143, s{sMASK}, v247
""")
for tb in range(2):
    x, stt, o = 240 + 2*tb, 244 + tb, 128 + 4*tb
    a(f"""
    v_lshlrev_b32 v{o}, 16, v{x}
    v_and_b32 v{o+1}, s{sMASK}, v{x}
    v_lshlrev_b32 v{o+2}, 16, v{x+1}
    v_and_b32 v{o+3}, s{sMASK}, v{x+1}
    v_and_b32 v144, s{sMASK}, v{stt}
    v_lshlrev_b32 v145, 16, v{stt}
    v_rcp_f32 v145, v145
    """)
    for i in range(4): a(f"v_sub_f32 v{148+i}, v{o+i}, v144")
    def rnd():
        a("v_cvt_pk_bf16_f32 v152, v148, v149\nv_cvt_pk_bf16_f32 v153, v150, v151")
        a(f"v_lshlrev_b32 v148, 16, v152\nv_and_b32 v149, s{sMASK}, v152\nv_lshlrev_b32 v150, 16, v153\nv_and_b32 v151, s{sMASK}, v153")
    rnd()
    for i in range(4): a(f"v_mul_f32 v{148+i}, v{148+i}, v145")
    rnd()
    for i in range(4): a(f"v_mul_f32 v{148+i}, v{148+i}, v{140+i}")
    rnd()
    for i in range(4): a(f"v_add_f32 v{o+i}, v{o+i}, v{148+i}")
a("s_waitcnt lgkmcnt(0)\ns_barrier")
stamp("finbar", True)
for tb in range(2):
    for q in range(8):
        if q < 2: base, off = 8, q*FLSZ + tb*8192
        elif q < 4: base, off = 12, (q-2)*FLSZ + tb*8192
        else: base, off = (9 if tb else 10), (q-4)*8192
        a(f"ds_read_b128 {vr(160+32*tb+4*q,4)}, v{base} offset:{off}", ("f", tb, q // 4))
for tb in range(2):
    o = 128 + 4*tb
    for hq in range(2):
        a.wait(lg=("f", tb, hq))
        for q in range(4*hq, 4*hq + 4):
            r = 160 + 32*tb + 4*q
            a(f"v_pk_add_f32 {vr(o,2)}, {vr(o,2)}, {vr(r,2)}\nv_pk_add_f32 {vr(o+2,2)}, {vr(o+2,2)}, {vr(r+2,2)}")
    a(f"buffer_store_dwordx4 {vr(o,4)}, v11, {srd(sOUT)}, s{sT[tb]} offen")
a(f"s_cmp_lg_u32 s2, 0xff\ns_cbranch_scc1 L_noep\ns_cmp_lg_u32 s{sW}, 0\ns_cbranch_scc1 L_noep")
a(f"v_mov_b32 v20, s{sTAG}\nv_mov_b32 v21, 0\ns_mov_b64 exec, 1")
a(f"buffer_store_dword v20, v21, {srd(sWS)}, 0 offen sc1")
a("s_mov_b64 exec, -1")
a.label("L_noep")
if STAMPS:
    stamp("stissued", True)
    a("s_waitcnt vmcnt(0)")
    stamp("end", True)
    a("s_memrealtime s[88:89]\ns_waitcnt lgkmcnt(0)\nv_writelane_b32 v255, s88, 63\nv_writelane_b32 v255, s84, 0\nv_writelane_b32 v255, s86, 1")
    a(f"s_lshl_b32 s{sT[0]}, s2, 3\ns_add_u32 s{sT[0]}, s{sT[0]}, s{sW}\ns_lshl_b32 s{sT[0]}, s{sT[0]}, 8\ns_add_u32 s{sT[0]}, s{sT[0]}, {WS_STAMP}")
    a(f"v_lshlrev_b32 v21, 2, v{vL}\nbuffer_store_dword v255, v21, {srd(sWS)}, s{sT[0]} offen")
    a.raw("; STAMPNAMES " + repr(stamp_names))
if OPT["pad"]:
    a(f"s_mov_b32 s10, {OPT['pad']}")
    if OPT["probe"]:
        a(f"s_waitcnt vmcnt(0) lgkmcnt(0)")
        if OPT["probe"] == "end": a("s_memrealtime s[88:89]\ns_waitcnt lgkmcnt(0)")
        a(f"s_sub_u32 s11, s88, s84\ns_mul_i32 s11, s11, 8\ns_and_b32 s12, s2, 0x3f\ns_cmp_eq_u32 s12, 0x15\ns_cselect_b32 s11, s11, 0\ns_add_u32 s10, s10, s11")
    a.label("L_pad")
    a(f"s_sleep 4\ns_memrealtime s[8:9]\ns_waitcnt lgkmcnt(0)\ns_sub_u32 s8, s8, s84\ns_cmp_lt_u32 s8, s10\ns_cbranch_scc1 L_pad")
a.label("L_end")
a("s_endpgm")
a.raw(f""".section .rodata,"a"
.p2align 6
.amdhsa_kernel {NAME}_kernel
  .amdhsa_next_free_vgpr 256
  .amdhsa_next_free_sgpr 102
  .amdhsa_accum_offset 256
  .amdhsa_group_segment_fixed_size 0
  .amdhsa_kernarg_size 120
  .amdhsa_user_sgpr_count 2
  .amdhsa_user_sgpr_kernarg_segment_ptr 1
  .amdhsa_system_sgpr_workgroup_id_x 1
.end_amdhsa_kernel""")
open(sys.argv[1], "w").write(a.text())
print("lines", len(a.lines), "nops", a.nnop, file=sys.stderr)
```

```python
import re
TRANS = ("v_exp_f32","v_log_f32","v_rcp_f32","v_rsq_f32","v_sqrt_f32","v_sin_f32","v_cos_f32")
def regs_of(tok):
    tok = tok.strip()
    neg = tok.lstrip("-")
    m = re.fullmatch(r"\|?([vsa])(\d+)\|?", neg)
    if m: return [(m.group(1), int(m.group(2)))]
    m = re.fullmatch(r"([vsa])\[(\d+):(\d+)\]", neg)
    if m: return [(m.group(1), i) for i in range(int(m.group(2)), int(m.group(3))+1)]
    if neg == "vcc": return [("s","vcc")]
    if neg in ("vcc_lo","vcc_hi"): return [("s","vcc")]
    if neg == "m0": return [("s","m0")]
    if neg in ("exec","exec_lo","exec_hi"): return [("s","exec")]
    return []
class Ins:
    def __init__(self, text):
        self.text = text
        t = text.split(";")[0].strip()
        parts = t.split(None, 1)
        self.op = parts[0]
        rest = parts[1] if len(parts) > 1 else ""
        ops = [o.strip() for o in rest.split(",")] if rest else []
        self.mods = ""
        if ops:
            full = rest
            m = re.search(r"\s(op_sel|neg_lo|neg_hi|offen|offset|row_|quad_perm|off\b|sc0|sc1|nt\b|lds\b|bitop3|dst_sel|clamp|wave_|bound_ctrl)", " " + full)
            if m:
                cut = m.start()
                self.mods = full[cut:] if cut <= len(full) else ""
                full = full[:cut]
            ops = [o.strip() for o in full.split(",") if o.strip()]
        self.ops = ops
        op = self.op
        self.is_mfma = op.startswith("v_mfma")
        self.is_valu = op.startswith("v_") and not self.is_mfma
        self.is_salu = op.startswith("s_")
        self.is_vmem = op.startswith(("buffer_","global_"))
        self.is_ds = op.startswith("ds_")
        self.is_trans = op.replace("_e32","").replace("_e64","") in TRANS
        self.is_dpp = "_dpp" in op or "row_" in self.mods or "quad_perm" in self.mods
        self.is_perml = op.startswith("v_permlane")
        self.is_rdl = op.startswith(("v_readlane","v_readfirstlane"))
        self.lds_dma = self.is_vmem and re.search(r"\blds\b", self.mods) is not None
        d, s = [], []
        R = [regs_of(o) for o in ops]
        if self.is_mfma:
            d = R[0]; self.A = R[1]; self.B = R[2]; self.C = R[3]; s = R[1]+R[2]+R[3]
        elif self.is_valu:
            if op.startswith("v_cmp"):
                d = R[0]; s = sum(R[1:], [])
            elif self.is_perml:
                d = R[0]+R[1]; s = R[0]+R[1]
            elif op.startswith(("v_add_co","v_sub_co","v_addc_co","v_subb_co","v_div_scale")):
                d = R[0]+R[1]; s = sum(R[2:], [])
            else:
                d = R[0]; s = sum(R[1:], [])
                if op.startswith(("v_fmac","v_dot2c","v_pk_fmac","v_writelane")) or self.is_dpp: s = s + R[0]
        elif self.is_vmem:
            if "store" in op or "atomic" in op: s = sum(R, [])
            elif self.lds_dma: s = sum(R, []) + [("s","m0")]
            else: d = R[0]; s = sum(R[1:], [])
        elif self.is_ds:
            if op.startswith(("ds_read","ds_bpermute","ds_permute","ds_swizzle")): d = R[0]; s = sum(R[1:], [])
            else: s = sum(R, [])
        elif self.is_salu:
            if op.startswith(("s_cmp","s_cbranch","s_branch","s_waitcnt","s_barrier","s_nop","s_sleep","s_setprio","s_endpgm","s_bitcmp")): s = sum(R, [])
            elif R: d = R[0]; s = sum(R[1:], [])
        self.d = set(d); self.s = set(s)
        self.wide_store = self.is_vmem and "store" in op and op.endswith(("x3","x4"))
        if self.wide_store:
            self.sdata = set(R[0]) if op.startswith("buffer") else set(R[1])
    def states(self):
        if self.op == "s_nop": return int(self.ops[0], 0) + 1
        return 1
def need(p, c):
    n = 0
    vd = {r for r in p.d if r[0] in "va"}
    sd = {r for r in p.d if r[0] == "s"}
    if p.is_mfma:
        passes = 8 if "32x32" in p.op else 4
        full = {8:12, 4:8}[passes]
        if c.is_mfma:
            if vd & (set(c.A)|set(c.B)): n = max(n, full)
            if vd & set(c.C) and set(c.C) != vd: n = max(n, {8:10,4:6}[passes])
            if vd & c.d and not (set(c.C) == vd): n = max(n, full)
        elif (c.is_valu or c.is_vmem or c.is_ds):
            if vd & (c.s | c.d): n = max(n, full)
        if c.is_valu and set(p.C) & c.d: n = max(n, {8:7,4:3}[passes])
    if p.is_valu:
        if c.is_mfma and vd & c.s: n = max(n, 2)
        if c.is_valu:
            if p.is_trans and not c.is_trans and vd & c.s: n = max(n, 1)
            if p.is_trans and c.is_trans and vd & c.s: n = max(n, 1)
            if (c.is_dpp or c.is_perml) and vd & c.s: n = max(n, 2)
            if c.is_rdl and vd & c.s: n = max(n, 1)
            if sd & c.s: n = max(n, 4 if c.is_rdl else 2)
            if c.op.startswith("v_cndmask") and ("s","vcc") in sd and len(c.ops) == 4 and c.ops[3] == "vcc": n = max(n, 2)
        if c.is_vmem and sd & c.s: n = max(n, 5)
        if c.is_salu and sd & c.s: n = max(n, 1)
    if p.is_salu:
        if ("s","m0") in p.d and c.lds_dma: n = max(n, 1)
        if ("s","exec") in p.d and (c.is_dpp): n = max(n, 1)
    if p.wide_store and (c.is_valu or c.is_ds or (c.is_vmem and c.d)) and p.sdata & c.d: n = max(n, 2)
    return n
class Asm:
    def __init__(self):
        self.lines = []
        self.hist = []
        self.vm = []
        self.lg = []
        self.nnop = 0
    def raw(self, t): self.lines.append(t)
    def label(self, name):
        self.lines.append(name + ":")
    def comment(self, t): self.lines.append("    ; " + t)
    def __call__(self, text, tag=None):
        for t in text.strip().split("\n"):
            t = t.strip()
            if not t or t.startswith(";"): continue
            self.emit(t, tag)
    def emit(self, t, tag=None):
        c = Ins(t)
        dist = 0; pad = 0
        for p in reversed(self.hist):
            n = need(p, c)
            if n > dist: pad = max(pad, n - dist)
            dist += p.states()
            if dist >= 20: break
        while pad > 0:
            k = min(pad, 16)
            nop = Ins(f"s_nop {k-1}"); self.lines.append("    " + nop.text); self.hist.append(nop); pad -= k; self.nnop += 1
        self.lines.append("    " + t); self.hist.append(c)
        if len(self.hist) > 40: self.hist = self.hist[-40:]
        if c.is_vmem: self.vm.append(tag)
        if c.is_ds: self.lg.append(tag)
        if c.op == "s_waitcnt":
            m = re.search(r"vmcnt\((\d+)\)", t)
            if m: n = int(m.group(1)); self.vm = self.vm[len(self.vm)-n:] if n < len(self.vm) and n > 0 else ([] if n == 0 else self.vm)
            m = re.search(r"lgkmcnt\((\d+)\)", t)
            if m: n = int(m.group(1)); self.lg = self.lg[len(self.lg)-n:] if n < len(self.lg) and n > 0 else ([] if n == 0 else self.lg)
    def _cnt(self, lst, tags):
        if not isinstance(tags, (list, set)): tags = [tags]
        last = -1
        for i, t in enumerate(lst):
            if t in tags: last = i
        if last < 0: return None
        return len(lst) - 1 - last
    def wait(self, vm=None, lg=None):
        parts = []
        if vm is not None:
            n = self._cnt(self.vm, vm)
            if n is not None: parts.append(f"vmcnt({min(n,63)})")
        if lg is not None:
            n = self._cnt(self.lg, lg)
            if n is not None: parts.append(f"lgkmcnt({min(n,15)})")
        if parts: self.emit("s_waitcnt " + " ".join(parts))
    def fork(self):
        return (list(self.hist), list(self.vm), list(self.lg))
    def restore(self, st):
        self.hist, self.vm, self.lg = list(st[0]), list(st[1]), list(st[2])
    def text(self): return "\n".join(self.lines) + "\n"


SCC_READ = ("s_cselect", "s_cbranch_scc", "s_addc", "s_subb", "s_cmov")
NO_SCC = ("s_mov", "s_mul_i32", "s_waitcnt", "s_nop", "s_sleep", "s_setprio", "s_barrier", "s_load", "s_buffer_load", "s_memtime", "s_memrealtime", "s_branch", "s_getpc", "s_cselect", "s_cbranch")
class Rec:
    def __init__(self): self.items = []
    def __call__(self, text, tag=None):
        for t in text.strip().split("\n"):
            t = t.strip()
            if t and not t.startswith(";"): self.items.append(("i", t, tag))
    def wait(self, vm=None, lg=None): self.items.append(("w", vm, lg))
    def label(self, n): self.items.append(("l", n, None))
    def call(self, f): self.items.append(("c", f, None))
    def groups(self):
        G = []; inexec = False; inlab = False
        for it in self.items:
            glue = inexec or inlab
            if it[0] == "i":
                op = it[1].split()[0]
                if op.startswith(SCC_READ):
                    k = len(G) - 1
                    def writes(g): return any(x[0] == "i" and x[1].startswith("s_") and not x[1].split()[0].startswith(NO_SCC) for x in g)
                    while k > 0 and not writes(G[k]): k -= 1
                    G[k:] = [sum(G[k:], [])]; glue = True
                if op.startswith("s_mov") and "exec" in it[1].split(",")[0]:
                    inexec = not it[1].replace(" ", "").endswith("exec,-1")
                if op.startswith("s_cbranch"): inlab = True
            if it[0] == "l":
                if inlab and G and any(x[0] == "i" and x[1].startswith("s_cbranch") for x in G[-1]): inlab = False
                else: inlab = True
            if glue and G: G[-1].append(it)
            else: G.append([it])
        return G
def replay(a, g):
    n = 0
    for it in g:
        if it[0] == "i": a(it[1], it[2]); n += 1
        elif it[0] == "w": a.wait(vm=it[1], lg=it[2])
        elif it[0] == "l": a.label(it[1])
        else: it[1]()
    return n
```

```python
import sys
from asmlib import Asm, Rec, replay
NAME = "parallel_sum__ssm_conv_s5__dense_activation_silu__prompt"
OPT = dict(stamps=0, pad=0, rt=0,
           r_mb=4, r_j=0, r_x0=2, r_x1=2,
           rot2=0, rot2a=1,
           tw2=1, ttlb=0, tcode=1, tchn=8,
           rown=-3, statc=-1, ldn=23, chk=27, suF=-2, parl=-1, parn=12, suS1=0, suS2=0, bg=1, bgF=4, bgS=6, epd=2, se=2, lsleep=12,
           wF=6, n1S=8, DA=6, fe=3, prio=1, psleep=8, fsh=7, pollm=19, inter=2, osc=1, lag=3, b3=6)
OPT["probe"] = ""
for a_ in sys.argv[2:]:
    k, v = a_.split("="); assert k in OPT, k; OPT[k] = v if k == "probe" else int(v)
STAMPS = OPT["stamps"]

WS_EPOCH = 0
WS_STAT  = 0x8000
WS_EGR   = 0x10000
WS_STAMP = 0x40000
WS_FLAG  = 0xc0000
FSH = OPT['fsh']; FSTR = 512 << FSH
WS_CSG   = 0x100000
WS_HID   = 0x140000
KS, KF = 152, 88
WS_SIZE  = WS_HID + 64*KS*1024
NST = 3
L_X, L_BW, L_W1 = 0, 49152, 73728
L_FE, L_SE = 110592, 126976
L_CS = 159744
L_RB = L_CS + 3072
L_SEG = 106496
L_FL, FLSZ = 0, 18432
L_SL, SLSZ = 73728, 8192
LDS_BYTES = 163840
sX, sB, sW1, sW2, sC0, sC1, sOUT, sWS = 40, 44, 48, 52, 56, 60, 64, 68
sW, sG, sMB, sJ, sRB, sNB, sTAG, sSB = 72, 73, 74, 75, 76, 77, 78, 98
sMASK, sROT, sR2F, sR2S = 38, 99, 100, 101
sT = [80, 81, 82, 83, 3, 4, 5, 6, 7, 39]
sE, sLt = 34, 35
sCODE, sCSL, sCSS = 26, 27, 14
srd = lambda r: f"s[{r}:{r+3}]"
vr = lambda a, n: f"v[{a}:{a+n-1}]"
MF = "v_mfma_f32_32x32x16_bf16"

class Proxy:
    def __init__(self, t): object.__setattr__(self, "t", t)
    def __call__(self, *x, **k): return self.t(*x, **k)
    def __getattr__(self, n): return getattr(self.t, n)
    def __setattr__(self, n, v): setattr(self.t, n, v)
real = Asm()
a = Proxy(real)
def record(fs):
    r = Rec(); object.__setattr__(a, "t", r)
    for f in fs: f()
    object.__setattr__(a, "t", real)
    return r.groups()
stamp_names = {"F": [], "S": []}
cur_stream = ["F"]
stamp_n = {"F": 0, "S": 0}
def stamp(name):
    if a.t is not real:
        a.call(lambda: stamp(name)); return
    if OPT["probe"] in (name, cur_stream[0] + name): a("s_memrealtime s[88:89]")
    if not STAMPS: return
    st = cur_stream[0]
    k = stamp_n[st]
    stamp_names[st].append(name); stamp_n[st] = k + 1
    r = 90 + 2*(k % 4)
    if k >= 3: a(f"v_writelane_b32 v255, s{90 + 2*((k-3) % 4)}, {k-3+2}")
    a(f"s_mem{'real' if OPT['rt'] else ''}time s[{r}:{r+1}]")
def finish():
    if STAMPS:
        a("s_waitcnt vmcnt(0)")
        stamp("end")
        st = cur_stream[0]; k = stamp_n[st]
        a("s_memrealtime s[88:89]\ns_waitcnt lgkmcnt(0)")
        for i in range(max(0, k-3), k): a(f"v_writelane_b32 v255, s{90 + 2*(i % 4)}, {i+2}")
        a("v_writelane_b32 v255, s88, 63\nv_writelane_b32 v255, s84, 0\nv_writelane_b32 v255, s86, 1")
        a(f"s_lshl_b32 s{sT[0]}, s2, 3\ns_add_u32 s{sT[0]}, s{sT[0]}, s{sW}\ns_lshl_b32 s{sT[0]}, s{sT[0]}, 8\ns_add_u32 s{sT[0]}, s{sT[0]}, {WS_STAMP}")
        a(f"v_lshlrev_b32 v21, 2, v1\nbuffer_store_dword v255, v21, {srd(sWS)}, s{sT[0]} offen")
    if OPT["pad"]:
        lab = newlabel("pad")
        a(f"s_mov_b32 s10, {OPT['pad']}")
        p = OPT["probe"]
        if p and not (p[0] in "FS" and p[0] != cur_stream[0]):
            a("s_waitcnt vmcnt(0) lgkmcnt(0)")
            if p == "end": a("s_memrealtime s[88:89]\ns_waitcnt lgkmcnt(0)")
            a("s_sub_u32 s11, s88, s84\ns_mul_i32 s11, s11, 8\ns_and_b32 s12, s2, 0x3f\ns_cmp_eq_u32 s12, 0x15\ns_cselect_b32 s11, s11, 0\ns_add_u32 s10, s10, s11")
        a.label(lab)
        a(f"s_sleep 4\ns_memrealtime s[8:9]\ns_waitcnt lgkmcnt(0)\ns_sub_u32 s8, s8, s84\ns_cmp_lt_u32 s8, s10\ns_cbranch_scc1 {lab}")
    a("s_endpgm")

def mksrd(r, p, size):
    a(f"s_mov_b32 s{r}, s{p}\ns_mov_b32 s{r+1}, s{p+1}\ns_mov_b32 s{r+2}, {hex(size)}\ns_mov_b32 s{r+3}, 0x20000")
def cmul(d, x, y):
    a(f"v_pk_mul_f32 {vr(d,2)}, {vr(x,2)}, {vr(y,2)} op_sel:[0,0] op_sel_hi:[0,1]")
    a(f"v_pk_fma_f32 {vr(d,2)}, {vr(x,2)}, {vr(y,2)}, {vr(d,2)} op_sel:[1,1,0] op_sel_hi:[1,0,1] neg_lo:[1,0,0]")
def cmuls(d, x, y):
    a(f"v_mul_f32 v{d}, v{x}, v{y}\nv_mul_f32 v{d+1}, v{x}, v{y+1}\nv_fma_f32 v{d}, -v{x+1}, v{y+1}, v{d}\nv_fmac_f32 v{d+1}, v{x+1}, v{y}")
def cfma(d, x, y, z, t):
    a(f"v_pk_fma_f32 {vr(t,2)}, {vr(x,2)}, {vr(y,2)}, {vr(z,2)} op_sel:[0,0,0] op_sel_hi:[0,1,1]")
    a(f"v_pk_fma_f32 {vr(d,2)}, {vr(x,2)}, {vr(y,2)}, {vr(t,2)} op_sel:[1,1,0] op_sel_hi:[1,0,1] neg_lo:[1,0,0]")
def dpp_sum(vs):
    for m in ("row_shr:1","row_shr:2","row_shr:4","row_shr:8"):
        for v in vs: a(f"v_add_f32_dpp v{v}, v{v}, v{v} {m} row_mask:0xf bank_mask:0xf bound_ctrl:0")
    for v in vs: a(f"v_add_f32_dpp v{v}, v{v}, v{v} row_bcast:15 row_mask:0xa bank_mask:0xf")
    for v in vs: a(f"v_add_f32_dpp v{v}, v{v}, v{v} row_bcast:31 row_mask:0xc bank_mask:0xf")
uid = [0]
def newlabel(p):
    uid[0] += 1; return f"L_{p}_{uid[0]}"
SPIN = 0x20000

def duty_table():
    rot = [(OPT["r_mb"]*(mb & 7) + OPT["r_x0"]*(mb >> 3)) & 7 for mb in range(16)]
    import itertools
    best = None
    for par in (0, 1):
        pick = []
        used = set()
        for pr in range(4):
            ch = 2*pr + par
            c = sorted(((ch - rot[mb]) & 7, mb) for mb in range(16) if mb not in used)
            pick.append(c[0]); used.add(c[0][1])
        m = max(p[0] for p in pick)
        if m <= 6 and (best is None or m < best[0]): best = (m, pick)
    code = [15]*16; slot = [0]*16
    for pr, (it, mb) in enumerate(best[1]): code[mb] = it; slot[mb] = pr
    return code, slot, best[0]
DUTY, DSLOT, MAXIT = duty_table()
DSTARTS = sorted(set(c for c in DUTY if c != 15))
assert 4*(MAXIT + 2) <= OPT["ldn"], MAXIT
DUTYW = sum(c << (4*i) for i, c in enumerate(DUTY))
DSLOTW = sum(c << (2*i) for i, c in enumerate(DSLOT))

hdr = open("cdna_kernels/%s.s.ref" % NAME).read().split("; Override")[0]
a.raw(hdr.rstrip())
a.raw(f"; @launch grid=(256,1,1) block=(512,1,1) lds={LDS_BYTES}")
a.raw('.amdgcn_target "amdgcn-amd-amdhsa--gfx950"\n.text\n.globl %s_kernel\n.p2align 8\n.type %s_kernel,@function' % (NAME, NAME))
a.label(NAME + "_kernel")
a("s_cmp_ge_u32 s2, 0x100\ns_cbranch_scc1 L_end")
a("s_load_dwordx16 s[8:23], s[0:1], 0\ns_load_dwordx8 s[24:31], s[0:1], 64\ns_load_dwordx2 s[32:33], s[0:1], 96\ns_load_dwordx2 s[36:37], s[0:1], 112")
if STAMPS or OPT["pad"]:
    a(f"s_memrealtime s[84:85]\ns_mem{'real' if OPT['rt'] else ''}time s[86:87]")
vL = 1
vH, vI, vF, vTmp, vTmp2, vTmp3, vTI = 20, 21, 22, 23, 24, 25, 26
vXA, vST, vSTA = 2, 28, 30
vROW, vONE, vCSA, vCSG = 128, 156, 160, 208
AUGW, AUGX, ACC1 = 64, 76, 80
a(f"""
v_lshrrev_b32 v2, 6, v0
v_and_b32 v1, 63, v0
v_readfirstlane_b32 s{sW}, v2
s_and_b32 s{sT[0]}, s2, 7
s_lshr_b32 s{sT[1]}, s2, 3
s_and_b32 s{sT[3]}, s{sT[0]}, 1
s_lshl_b32 s{sMB}, s{sT[3]}, 3
s_and_b32 s{sNB}, s{sT[1]}, 7
s_add_u32 s{sMB}, s{sMB}, s{sNB}
s_lshr_b32 s{sT[4]}, s{sT[0]}, 1
s_lshl_b32 s{sJ}, s{sT[4]}, 2
s_lshr_b32 s{sT[2]}, s{sT[1]}, 3
s_add_u32 s{sJ}, s{sJ}, s{sT[2]}
s_lshl_b32 s{sRB}, s{sT[0]}, 2
s_add_u32 s{sRB}, s{sRB}, s{sT[2]}
s_mul_i32 s{sROT}, s{sNB}, {OPT['r_mb']}
""")
for reg, key in ((sT[2], "r_j"), (sT[3], "r_x0"), (sT[4], "r_x1")):
    if OPT[key]: a(f"s_mul_i32 s{sT[5]}, s{reg}, {OPT[key]}\ns_add_u32 s{sROT}, s{sROT}, s{sT[5]}")
a(f"""
s_and_b32 s{sG}, s{sW}, 3
v_lshrrev_b32 v{vH}, 5, v{vL}
v_and_b32 v{vTmp2}, 7, v{vL}
v_lshrrev_b32 v{vTmp3}, 4, v{vL}
v_xor_b32 v27, v{vTmp2}, v{vTmp3}
v_lshlrev_b32 v27, 4, v27
v_lshlrev_b32 v31, 4, v{vL}
s_lshl_b32 s{sT[4]}, s{sMB}, 4
s_add_u32 s{sT[4]}, s{sT[4]}, s{sJ}
s_cmp_ge_u32 s{sW}, 4
s_cbranch_scc1 L_Spro
""")
st0 = a.fork()

def row_load():
    a(f"s_lshl_b32 s{sT[0]}, s{sT[4]}, 2\ns_add_u32 s{sT[0]}, s{sT[0]}, s{sG}\ns_lshl_b32 s{sT[0]}, s{sT[0]}, 11")
    a(f"buffer_load_dwordx4 {vr(vROW,4)}, v31, {srd(sX)}, s{sT[0]} offen", "row")
    a(f"buffer_load_dwordx4 {vr(vROW+4,4)}, v31, {srd(sX)}, s{sT[0]} offen offset:1024", "row")
def kchunk(c, dst, base, mul):
    a(f"s_add_u32 s{dst}, s{sROT}, {c}\ns_and_b32 s{dst}, s{dst}, 7\ns_mul_i32 s{dst}, s{dst}, {mul}\ns_add_u32 s{dst}, s{dst}, s{base}")

vWA, vDX = 6, 10
a(f"""
v_bfe_u32 v{vTmp}, v{vL}, 3, 2
v_lshl_add_u32 v{vTmp}, v{vH}, 4, v{vTmp}
v_lshl_add_u32 v{vDX}, v{vTmp}, 10, v27
v_add_u32 v{vDX+2}, 0x1800, v{vDX}
v_xor_b32 v{vDX+1}, 64, v{vDX}
v_add_u32 v{vDX+1}, 0xc00, v{vDX+1}
v_add_u32 v{vDX+3}, 0x1800, v{vDX+1}
s_lshl_b32 s{sT[7]}, s{sMB}, 17
s_lshl_b32 s{sT[0]}, s{sG}, 15
s_add_u32 s{sT[7]}, s{sT[7]}, s{sT[0]}
s_lshl_b32 s{sT[8]}, s{sG}, 12
s_mov_b32 s{sX+2}, 0x200000
s_mov_b32 s{sX+3}, 0x20000
""")
def dmaF(c):
    def one(i):
        def f():
            if i == 0:
                kchunk(c, sT[9], sT[7], 128)
                a(f"s_add_u32 m0, s{sT[8]}, {L_X + (c % NST)*16384}")
            a(f"buffer_load_dwordx4 v{vDX+i}, {srd(sX)}, s{sT[9]} offen offset:{1024*i} lds", ("c", c))
        return f
    return [one(i) for i in range(4)]
a(f"s_waitcnt lgkmcnt(0)\ns_mov_b32 s{sX}, s8\ns_mov_b32 s{sX+1}, s9")
stamp("kernarg")
if OPT["rown"] == -3: row_load()
for f in dmaF(0): f()
if OPT["rown"] == -2: row_load()
a("s_branch L_common")
stF0 = a.fork()

a.restore(st0); cur_stream[0] = "S"
a.label("L_Spro")
vBA, vDB, vDW = 6, 10, 12
a(f"""
s_mul_i32 s{sSB}, s{sJ}, 3
s_lshl_b32 s{sT[5]}, s{sJ}, 1
s_add_u32 s{sT[5]}, s{sT[5]}, 11
s_min_u32 s{sSB}, s{sSB}, s{sT[5]}
v_lshrrev_b32 v{vTmp}, 3, v{vL}
v_lshl_add_u32 v{vDB}, v{vTmp}, 10, v27
v_xor_b32 v{vDB+1}, 64, v{vDB}
v_add_u32 v{vDB+1}, 0x1c00, v{vDB+1}
v_lshrrev_b32 v{vTmp}, 2, v{vL}
v_mul_u32_u24 v{vTmp}, 2752, v{vTmp}
v_and_b32 v{vTmp2}, 3, v{vL}
v_lshl_add_u32 v{vDW}, v{vTmp2}, 4, v{vTmp}
s_lshl_b32 s{sT[7]}, s{sJ}, 15
s_and_b32 s{sT[0]}, s{sG}, 1
s_lshl_b32 s{sT[0]}, s{sT[0]}, 14
s_add_u32 s{sT[7]}, s{sT[7]}, s{sT[0]}
s_mul_i32 s{sT[6]}, s{sG}, {16*2752}
s_lshl_b32 s{sT[0]}, s{sSB}, 6
s_add_u32 s{sT[6]}, s{sT[6]}, s{sT[0]}
s_lshl_b32 s{sT[8]}, s{sG}, 11
s_mul_i32 s{sT[2]}, s{sG}, 3072
s_mov_b32 s{sB+2}, 0x80000
s_mov_b32 s{sB+3}, 0x20000
s_mov_b32 s{sW1+2}, {512*1376*2}
s_mov_b32 s{sW1+3}, 0x20000
v_and_b32 v{vI}, 31, v{vL}
s_lshl_b32 s{sT[0]}, s{sJ}, 6
v_lshl_add_u32 v19, v{vI}, 1, s{sT[0]}
""")
def dmaS(c):
    def bw(i):
        def f():
            if i == 0:
                kchunk(c, sT[9], sT[7], 128)
                a(f"s_add_u32 m0, s{sT[8]}, {L_BW + (c % NST)*8192}")
            a(f"buffer_load_dwordx4 v{vDB+i}, {srd(sB)}, s{sT[9]} offen offset:{1024*i} lds", ("c", c))
        return f
    def w1(b):
        def f():
            if b == 0: kchunk(c, sT[9], sT[6], 64*2752)
            a(f"s_add_u32 m0, s{sT[2]}, {L_W1 + (c % NST)*12288 + 960*b}")
            a(f"buffer_load_dwordx4 v{vDW}, {srd(sW1)}, s{sT[9]} offen offset:{64*b} lds", ("c", c))
        return f
    return [w1(0), w1(1), w1(2), bw(0), bw(1)]
a(f"""
s_cmp_ge_u32 s{sG}, 2
s_waitcnt lgkmcnt(0)
s_cselect_b32 s{sB}, s16, s14
s_cselect_b32 s{sB+1}, s17, s15
s_mov_b32 s{sW1}, s28
s_mov_b32 s{sW1+1}, s29
""")
stamp("kernarg")
for f in dmaS(0): f()
def par_load():
    a(f"global_load_ushort v150, v19, s[10:11]", "par")
    a(f"global_load_ushort v151, v19, s[12:13]", "par")
    a(f"global_load_ushort v152, v19, s[22:23]", "par")
stS0 = a.fork()

a.label("L_common")
a.vm = []
a(f"s_load_dword s{sTAG}, s[36:37], {WS_EPOCH}")
if OPT["tcode"]:
    a("s_getpc_b64 s[0:1]")
    a.raw("L_pcref:")
    a(f"""
    s_and_b32 s{sT[0]}, s2, 0xf8
    s_add_u32 s{sT[0]}, s{sT[0]}, s{sW}
    s_lshl_b32 s{sT[0]}, s{sT[0]}, 7
    s_min_u32 s{sT[0]}, s{sT[0]}, L_end-L_pcref
    v_mov_b32 v{vTmp}, s{sT[0]}
    s_mov_b64 exec, 1
    """)
    a(f"global_load_dword v254, v{vTmp}, s[0:1]", "touch")
    a("s_mov_b64 exec, -1")
mksrd(sWS, 36, WS_SIZE)
a(f"""
s_mov_b32 s{sMASK}, 0xffff0000
v_and_b32 v{vI}, 31, v{vL}
v_bfe_u32 v{vF}, v{vL}, 1, 3
v_xor_b32 v{vTmp}, v{vH}, v{vF}
v_lshlrev_b32 v{vTmp}, 4, v{vTmp}
v_lshl_add_u32 v{vTmp}, v{vI}, 7, v{vTmp}
s_lshl_b32 s{sT[0]}, s{sG}, 12
v_add_u32 v{vXA}, s{sT[0]}, v{vTmp}
v_xor_b32 v{vXA+1}, 32, v{vXA}
v_xor_b32 v{vXA+2}, 64, v{vXA}
v_xor_b32 v{vXA+3}, 0x60, v{vXA}
s_mov_b32 s16, {hex(DUTYW & 0xffffffff)}
s_mov_b32 s17, {hex(DUTYW >> 32)}
s_lshl_b32 s{sT[0]}, s{sMB}, 2
s_lshr_b64 s[16:17], s[16:17], s{sT[0]}
s_and_b32 s{sCODE}, s16, 15
s_lshr_b32 s{sT[0]}, s{sW}, 2
s_cmp_eq_u32 s{sG}, s{sT[0]}
s_cselect_b32 s{sCODE}, s{sCODE}, 15
s_lshl_b32 s{sT[0]}, s{sT[0]}, 4
s_add_u32 s{sT[0]}, s{sT[0]}, s{sJ}
s_lshl_b32 s{sT[0]}, s{sT[0]}, 11
s_add_u32 s{sCSL}, s{sT[0]}, {WS_CSG}
s_lshl_b32 s{sT[0]}, s{sMB}, 1
s_lshr_b32 s{sT[1]}, {hex(DSLOTW)}, s{sT[0]}
s_and_b32 s{sT[1]}, s{sT[1]}, 3
s_lshl_b32 s{sT[1]}, s{sT[1]}, 9
s_add_u32 s{sCSS}, s{sCSL}, s{sT[1]}
""")
for i in range(4): a(f"v_mov_b32 v{vONE+i}, 0x3f803f80")
def zrot():
    a(f"""
    s_and_b32 s{sT[0]}, s{sRB}, 3
    s_lshl_b32 s{sT[0]}, s{sT[0]}, 1
    s_mul_i32 s{sT[1]}, s{sNB}, {OPT['rot2a']}
    s_add_u32 s{sT[0]}, s{sT[0]}, s{sT[1]}
    s_and_b32 s{sT[0]}, s{sT[0]}, 7
    """)
def commonB(nb):
    a(f"""
    v_bfe_u32 v{vTmp2}, v{vL}, 2, 1
    v_bfe_u32 v{vTmp3}, v{vL}, 3, 2
    v_and_b32 v{vTI}, 3, v{vL}
    v_lshl_add_u32 v{vTI}, v{vTmp2}, 4, v{vTI}
    v_lshl_add_u32 v{vTI}, v{vTmp3}, 2, v{vTI}
    v_lshrrev_b32 v{vTmp2}, 3, v{vTI}
    v_and_b32 v{vSTA}, 7, v{vTI}
    v_lshlrev_b32 v{vSTA}, 3, v{vSTA}
    v_lshl_add_u32 v{vSTA}, v{vTmp2}, 7, v{vSTA}
    s_lshl_b32 s{sT[5]}, s{sMB}, 11
    s_lshl_b32 s{sT[0]}, s{sG}, 9
    s_add_u32 s{sT[5]}, s{sT[5]}, s{sT[0]}
    s_add_u32 s{sT[5]}, s{sT[5]}, {WS_STAT}
    """)
    for b in range(nb):
        for i in range(1, 4): a(f"v_mov_b32 v{AUGW+4*b+i}, 0")
    for i in range(1, 4): a(f"v_mov_b32 v{AUGX+i}, 0")
common_ops = list(a.vm)
a(f"s_cmp_ge_u32 s{sW}, 4\ns_cbranch_scc1 L_S")
stC = a.fork()

def touches(which):
    if which == "F":
        if OPT["tw2"]:
            a(f"""
            s_lshl_b32 s{sT[0]}, s2, 2
            s_add_u32 s{sT[0]}, s{sT[0]}, s{sG}
            s_mul_i32 s{sT[0]}, s{sT[0]}, {11*128}
            v_lshlrev_b32 v{vTmp}, 7, v{vL}
            s_mov_b64 exec, 0x7ff
            """)
            a(f"buffer_load_dword v254, v{vTmp}, {srd(sW2)}, s{sT[0]} offen", "touch")
            a("s_mov_b64 exec, -1")
        if OPT["ttlb"]:
            a(f"v_lshlrev_b32 v{vTmp}, 20, v{vL}\ns_mov_b64 exec, 0x7ff")
            a(f"buffer_load_dword v254, v{vTmp}, {srd(sWS)}, 0 offen offset:2048 sc1", "touch")
            a("s_mov_b64 exec, 0xf")
            a(f"buffer_load_dword v254, v{vTmp}, {srd(sOUT)}, 0 offen", "touch")
            a("s_mov_b64 exec, -1")
    elif OPT["tw2"]:
        a(f"""
        s_lshl_b32 s{sT[0]}, s2, 2
        s_add_u32 s{sT[0]}, s{sT[0]}, s{sG}
        s_lshl_b32 s{sT[0]}, s{sT[0]}, 9
        v_lshlrev_b32 v{vTmp}, 7, v{vL}
        s_mov_b64 exec, 0xf
        """)
        a(f"buffer_load_dword v254, v{vTmp}, {srd(sC0)}, s{sT[0]} offen", "touch")
        a(f"buffer_load_dword v254, v{vTmp}, {srd(sC1)}, s{sT[0]} offen", "touch")
        a("s_mov_b64 exec, -1")

def stats():
    a.wait(vm="row")
    stamp("row")
    R = (0, 1)
    e = lambda r: 216 + 16*r
    s_ = lambda r: 224 + 16*r
    for r in R:
        for i in range(4):
            a(f"v_lshlrev_b32 v{e(r)+2*i}, 16, v{vROW+4*r+i}\nv_and_b32 v{e(r)+2*i+1}, s{sMASK}, v{vROW+4*r+i}")
    for r in R:
        x, s = e(r), s_(r)
        a(f"v_add_f32 v{s}, v{x}, v{x+1}\nv_add_f32 v{s+1}, v{x+2}, v{x+3}\nv_add_f32 v{s+2}, v{x+4}, v{x+5}\nv_add_f32 v{s+3}, v{x+6}, v{x+7}")
        a(f"v_add_f32 v{s}, v{s}, v{s+1}\nv_add_f32 v{s+2}, v{s+2}, v{s+3}\nv_add_f32 v{s}, v{s}, v{s+2}")
    dpp_sum([s_(r) for r in R])
    for r in R: a(f"v_readlane_b32 s{sT[r]}, v{s_(r)}, 63")
    for r in R: a(f"v_mov_b32 v{s_(r)+1}, 0x3b000000")
    for r in R: a(f"v_mul_f32 v{s_(r)+1}, s{sT[r]}, v{s_(r)+1}")
    for r in R:
        x, s = e(r), s_(r)
        for i in range(8): a(f"v_sub_f32 v{x+i}, v{x+i}, v{s+1}")
        a(f"v_mul_f32 v{s}, v{x}, v{x}\nv_mul_f32 v{s+2}, v{x+1}, v{x+1}")
        for i in range(2, 8): a(f"v_fmac_f32 v{s+(i&1)*2}, v{x+i}, v{x+i}")
        a(f"v_add_f32 v{s}, v{s}, v{s+2}")
    dpp_sum([s_(r) for r in R])
    for t in ("v_mul_f32 v{s}, 0x3b000000, v{s}", "v_cvt_pk_bf16_f32 v{s}, v{s}, v{s}", "v_lshlrev_b32 v{s}, 16, v{s}",
              "v_add_f32 v{s}, 0x3727c5ac, v{s}", "v_cvt_pk_bf16_f32 v{s}, v{s}, v{s}", "v_lshlrev_b32 v{s}, 16, v{s}", "v_sqrt_f32 v{s}, v{s}"):
        for r in R: a(t.format(s=s_(r)))
    tag_ready()
    a(f"""
    v_cvt_pk_bf16_f32 v128, v{s_(0)}, v{s_(0)+1}
    v_cvt_pk_bf16_f32 v130, v{s_(1)}, v{s_(1)+1}
    v_mov_b32 v129, s{sTAG}
    v_mov_b32 v131, s{sTAG}
    s_lshl_b32 s{sT[0]}, s{sT[4]}, 7
    s_lshl_b32 s{sT[1]}, s{sG}, 4
    s_add_u32 s{sT[0]}, s{sT[0]}, s{sT[1]}
    s_add_u32 s{sT[0]}, s{sT[0]}, {WS_STAT}
    v_mov_b32 v132, 0
    s_mov_b32 exec_lo, 0
    s_mov_b32 exec_hi, 0x80000000
    """)
    a(f"buffer_store_dwordx4 v[128:131], v132, {srd(sWS)}, s{sT[0]} offen sc1", "stat_st")
    a("s_mov_b64 exec, -1")
tagdone = {"F": False, "S": False}
def tag_ready():
    if tagdone[cur_stream[0]]: return
    tagdone[cur_stream[0]] = True
    a(f"s_waitcnt lgkmcnt(0)\ns_add_u32 s{sTAG}, s{sTAG}, 0x9e3779b9\ns_mov_b32 s{sTAG+1}, s{sTAG}")

def gran_load(tag):
    a(f"buffer_load_dwordx2 {vr(vST,2)}, v{vSTA}, {srd(sWS)}, s{sT[5]} offen sc1", tag)
    a(f"buffer_load_dwordx4 {vr(vCSG,4)}, v31, {srd(sWS)}, s{sCSL} offen sc1", tag)
    a(f"buffer_load_dwordx4 {vr(vCSG+4,4)}, v31, {srd(sWS)}, s{sCSL} offen offset:1024 sc1", tag)
ool = []
def gran_check(nb, stream):
    top, retry = newlabel("gc"), newlabel("gr")
    a(f"s_mov_b32 s{sT[3]}, {SPIN}")
    a.wait(vm="gran")
    a.label(top)
    a(f"""
    v_xor_b32 v128, s{sTAG}, v{vST+1}
    v_xor_b32 v129, s{sTAG}, v{vCSG+3}
    v_xor_b32 v130, s{sTAG}, v{vCSG+7}
    v_or3_b32 v128, v128, v129, v130
    v_cmp_ne_u32 vcc, 0, v128
    s_cmp_lg_u64 vcc, 0
    s_cbranch_scc1 {retry}
    """)
    cont = newlabel("gx")
    a.label(cont)
    def blk():
        a.label(retry)
        a("s_sleep 8")
        gran_load(None)
        a(f"s_waitcnt vmcnt(0)\ns_sub_u32 s{sT[3]}, s{sT[3]}, 1\ns_cmp_lg_u32 s{sT[3]}, 0\ns_cbranch_scc1 {top}\ns_branch {cont}")
    ool.append(blk)
    stamp("gran")
    for b in range(nb): a(f"v_add_f32 v{128+b}, v{vCSG+b}, v{vCSG+4+b}")
    for b in range(nb): a(f"v_mov_b32 v{132+b}, v{128+b}")
    a(f"""
    v_and_b32 v{AUGX}, s{sMASK}, v{vST}
    v_cmp_gt_u32 vcc, 32, v{vL}
    v_cvt_pk_bf16_f32 v{AUGX}, -v{AUGX}, -v{AUGX}
    """)
    for b in range(nb): a(f"v_permlane32_swap_b32 v{128+b}, v{132+b}")
    a(f"v_cndmask_b32 v{AUGX}, 0, v{AUGX}, vcc")
    for b in range(nb): a(f"v_add_f32 v{128+b}, v{128+b}, v{132+b}")
    for b in range(nb):
        a(f"v_and_b32 v{132+b}, s{sMASK}, v{128+b}\nv_sub_f32 v{128+b}, v{128+b}, v{132+b}\nv_cvt_pk_bf16_f32 v{AUGW+4*b}, v{128+b}, v{132+b}")

wset = lambda n: 40 + 12*(n & 1)
def duty_hook(n, nb):
    for st in DSTARTS:
        if not (4*st <= n < 4*st + 8): continue
        go, back = newlabel("du"), newlabel("db")
        a(f"s_cmp_eq_u32 s{sCODE}, {st}\ns_cbranch_scc1 {go}")
        a.label(back)
        def blk(go=go, back=back, first=(n == 4*st), last=(n == 4*st + 7)):
            a.label(go)
            for b in range(nb):
                acc = vr(vCSA + 16*b, 16)
                a(f"{MF} {acc}, {vr(vONE,4)}, {vr(wset(n)+4*b,4)}, {'0' if first else acc}")
            if last:
                for b in range(nb): a(f"v_mov_b32 v{vCSG+b}, v{vCSA+16*b}")
                for b in range(nb, 4): a(f"v_mov_b32 v{vCSG+b}, s{sTAG}")
                a("s_mov_b32 exec_hi, 0")
                a(f"buffer_store_dwordx4 {vr(vCSG,4)}, v31, {srd(sWS)}, s{sCSS} offen sc1")
                a("s_mov_b64 exec, -1")
            a(f"s_branch {back}")
        ool.append(blk)

def p1_loop(nb, reads, mfma, dma, extra_dma, events, bgev, bgk):
    for ev in events.get(-2, []): ev()
    stamp("pre2")
    for f in dma(1): f()
    for ev in events.get(-1, []): ev()
    stamp("pre")
    a.wait(vm=("c", 0))
    stamp("c0w")
    tag_ready()
    a("s_barrier")
    stamp("c0")
    reads(0)
    pend = []; bg = []
    for n in range(32):
        if n == OPT["ldn"]: assert not bg, ("background queue late", len(bg))
        if n in bgev: bg += record(bgev[n])
        c, s = n >> 2, n & 3
        if s == 0: pend = dma(c + NST - 1) if c + NST - 1 < 8 else extra_dma(c)
        if s == 3:
            a.wait(vm=("c", c + 1), lg=[("r", n), "cs"]); a("s_barrier")
            stamp(f"c{c+1}")
        elif OPT["inter"]:
            a.wait(lg=("r", n))
        if not OPT["inter"]:
            if n + 1 < 32: reads(n + 1)
            a.wait(lg=("r", n))
        nd = (len(pend) + (2 - s)) // (3 - s) if s < 3 else 0
        for b in range(nb):
            mfma(n, b)
            if b == 0 and OPT["inter"] and n + 1 < 32: reads(n + 1)
            if nd > 0 and pend:
                pend.pop(0)(); nd -= 1
            k = bgk if n < 30 else 1000
            while bg and k > 0: k -= replay(a, bg.pop(0))
        assert s < 2 or not pend
        duty_hook(n, nb)
        for ev in events.get(n, []): ev()

def flag_prep(stream, dst):
    a(f"""
    s_lshl_b32 s{sT[0]}, s{sMB}, 1
    s_lshr_b32 s{sT[1]}, s{sG}, 1
    s_add_u32 s{sT[0]}, s{sT[0]}, s{sT[1]}
    s_lshl_b32 s{sT[0]}, s{sT[0]}, 4
    s_add_u32 s{sT[0]}, s{sT[0]}, s{sJ}
    s_lshl_b32 s{sT[0]}, s{sT[0]}, {FSH}
    s_and_b32 s{sT[1]}, s{sG}, 1
    s_lshl_b32 s{sT[1]}, s{sT[1]}, 2
    s_add_u32 s{sT[0]}, s{sT[0]}, s{sT[1]}
    s_add_u32 s{dst}, s{sT[0]}, {WS_FLAG + stream*FSTR}
    v_mov_b32 v18, s{sTAG}
    v_mov_b32 v19, 0
    """)
def flag_store(src):
    a.wait(vm="hid_st")
    a("s_mov_b64 exec, 1")
    a(f"buffer_store_dword v18, v19, {srd(sWS)}, s{src} offen sc1", "flag_st")
    a("s_mov_b64 exec, -1")
def poll_prep(stream):
    a(f"""
    s_lshl_b32 s{sT[1]}, s{sRB}, 4
    s_add_u32 s{sT[0]}, s{sT[0]}, s{sT[1]}
    s_lshl_b32 s{sT[0]}, s{sT[0]}, {FSH}
    s_add_u32 s{sT[0]}, s{sT[0]}, {WS_FLAG + stream*FSTR}
    s_add_u32 s20, s36, s{sT[0]}
    s_addc_u32 s21, s37, 0
    """)
def poll_issue(n):
    for i in range(n): a(f"s_load_dwordx2 s[{8+2*i}:{9+2*i}], s[20:21], {i << FSH} glc")
def poll_check(n):
    top, done, retry = newlabel("fp"), newlabel("fd"), newlabel("fr")
    a(f"s_mov_b32 s{sT[3]}, {SPIN}")
    a.label(top)
    a("s_waitcnt lgkmcnt(0)")
    for i in range(n):
        a(f"s_cmp_lg_u64 s[{8+2*i}:{9+2*i}], s[{sTAG}:{sTAG+1}]\ns_cbranch_scc1 {retry}")
    a.label(done)
    def blk():
        a.label(retry)
        first = newlabel("ff")
        a(f"s_cmp_eq_u32 s{sT[3]}, {SPIN}\ns_cbranch_scc1 {first}")
        if OPT["psleep"]: a(f"s_sleep {OPT['psleep']}")
        a.label(first)
        poll_issue(n)
        a(f"s_sub_u32 s{sT[3]}, s{sT[3]}, 1\ns_cmp_lg_u32 s{sT[3]}, 0\ns_cbranch_scc1 {top}\ns_waitcnt lgkmcnt(0)\ns_branch {done}")
    ool.append(blk)

ACC2, ABUF, DA, HELD = 64, 16, OPT["DA"], 128
def dump_addr(b0, b1):
    a(f"""
    v_lshrrev_b32 v5, 5, v{vL}
    v_and_b32 v6, 7, v{vL}
    v_and_b32 v4, 31, v{vL}
    v_xor_b32 v5, v5, v6
    v_lshlrev_b32 v5, 4, v5
    v_lshl_add_u32 v12, v4, 7, v5
    v_add_u32 v4, s{b0}, v12
    v_xor_b32 v5, 32, v4
    v_xor_b32 v6, 64, v4
    v_xor_b32 v7, 0x60, v4
    v_add_u32 v8, s{b1}, v12
    v_xor_b32 v9, 32, v8
    v_xor_b32 v10, 64, v8
    v_xor_b32 v11, 0x60, v8
    """)
def dump_ops(tb, off1):
    return [f"ds_write_b128 v{4+4*tb+g}, {vr(ACC2+16*(2*db+tb)+4*g,4)} offset:{tb*off1+db*4096}" for db in range(2) for g in range(4)]
def p2_loop(nsteps, held, breads, aoff, lag, off1, b0, b1, hooks):
    seq = []
    for n in range(nsteps - lag): seq += [(n, 0), (n, 1)]
    seq += [(n, 0) for n in range(nsteps - lag, nsteps)] + [(n, 1) for n in range(nsteps - lag, nsteps)]
    NB = 2*DA
    last = [None]
    def aload(k):
        n, tb = seq[k]
        if last[0] != n: aoff(n); last[0] = n
        a(f"buffer_load_dwordx4 {vr(ABUF + 4*(k % NB),4)}, v{2+tb}, {srd(sWS)}, s{sT[9]} offen sc1", ("a", k))
    for k in range(NB): aload(k)
    dumpq = []
    for k, (n, tb) in enumerate(seq):
        a.wait(vm=("a", k))
        if n >= held: a.wait(lg=("b", n))
        w = HELD + 8*(n % held)
        for db in range(2):
            acc = vr(ACC2 + 16*(2*db + tb), 16)
            a(f"{MF} {acc}, {vr(w+4*db,4)}, {vr(ABUF + 4*(k % NB),4)}, {'0' if n == 0 else acc}")
            if dumpq and k > len(seq) - lag:
                for _ in range(min(len(dumpq), -(-8 // max(1, 2*(lag-1))))): a(dumpq.pop(0))
        if k + NB < len(seq): aload(k + NB)
        if tb == 1 and n < held: breads(n + held, w)
        if tb == 1 and n == held: dump_addr(b0, b1)
        if tb == 0 and n == nsteps - 1: dumpq = dump_ops(0, off1)
        if tb == 1 and n in (0, 5, 10): stamp(f"a{n}")
        for h in hooks.get(k - len(seq), []): h()
    stamp("p2end")
    for o in dumpq + dump_ops(1, off1): a(o)

def hid_voffs():
    a(f"v_lshlrev_b32 v2, 4, v{vL}\nv_add_u32 v3, {KS*1024}, v2")
def emit_ool():
    for b in ool:
        a.hist = []; b()
    del ool[:]

cur_stream[0] = "F"
a.restore(stC); a.vm = stF0[1] + common_ops
a(f"""
v_bfe_u32 v{vTmp}, v{vL}, 2, 2
v_lshl_add_u32 v{vTmp}, v{vH}, 3, v{vTmp}
v_lshlrev_b32 v{vTmp}, 6, v{vTmp}
v_bfe_u32 v{vTmp2}, v{vL}, 4, 1
v_lshl_add_u32 v{vTmp}, v{vTmp2}, 5, v{vTmp}
v_and_b32 v{vTmp2}, 1, v{vL}
v_lshl_add_u32 v{vTmp}, v{vTmp2}, 4, v{vTmp}
v_bfe_u32 v{vTmp2}, v{vL}, 1, 1
v_lshl_add_u32 v{vTmp}, v{vTmp2}, 3, v{vTmp}
v_add_u32 v{vWA}, {L_W1}, v{vTmp}
""")
def setupF():
    mksrd(sW2, 30, 512*1376*2)
    mksrd(sOUT, 32, 0x400000)
    zrot()
    a(f"""
    s_mul_i32 s{sR2F}, s{sT[0]}, {22*OPT['rot2']}
    s_lshr_b32 s{sR2F}, s{sR2F}, 3
    s_mul_i32 s{sSB}, s{sJ}, 3
    s_lshl_b32 s{sT[0]}, s{sJ}, 1
    s_add_u32 s{sT[0]}, s{sT[0]}, 11
    s_min_u32 s{sSB}, s{sSB}, s{sT[0]}
    v_lshrrev_b32 v248, 3, v{vL}
    v_and_b32 v{vTmp}, 7, v{vL}
    v_bfe_u32 v{vTmp2}, v{vL}, 4, 1
    v_lshlrev_b32 v{vTmp2}, 2, v{vTmp2}
    v_xor_b32 v{vTmp}, v{vTmp}, v{vTmp2}
    v_lshlrev_b32 v{vTmp}, 4, v{vTmp}
    v_lshl_add_u32 v248, v248, 10, v{vTmp}
    v_add_u32 v253, 0x1c00, v248
    v_bfe_u32 v{vTmp}, v{vL}, 2, 2
    v_lshl_add_u32 v249, v{vH}, 3, v{vTmp}
    v_lshlrev_b32 v249, 7, v249
    v_bfe_u32 v{vTmp}, v{vL}, 3, 1
    v_lshl_add_u32 v249, v{vTmp}, 6, v249
    v_bfe_u32 v{vTmp}, v{vL}, 4, 1
    v_lshl_add_u32 v249, v{vTmp}, 5, v249
    v_and_b32 v{vTmp}, 3, v{vL}
    v_lshl_add_u32 v249, v{vTmp}, 3, v249
    s_lshl_b32 s{sE}, s{sG}, 12
    s_add_u32 s{sE}, s{sE}, {L_FE}
    s_mul_i32 s{sLt}, s{sG}, {FLSZ}
    v_add_u32 v251, s{sLt}, v249
    v_add_u32 v249, s{sE}, v249
    v_xor_b32 v250, 64, v249
    v_xor_b32 v252, 64, v251
    s_mul_i32 s{sT[6]}, s{sG}, {352*1024}
    s_lshl_b32 s{sT[0]}, s{sNB}, 7
    s_add_u32 s{sT[6]}, s{sT[6]}, s{sT[0]}
    s_lshl_b32 s{sT[0]}, s{sMB}, 2
    s_add_u32 s{sT[0]}, s{sT[0]}, s{sG}
    s_mul_i32 s{sT[0]}, s{sT[0]}, {KS*1024}
    s_lshl_b32 s{sT[1]}, s{sSB}, 11
    s_add_u32 s{sT[0]}, s{sT[0]}, s{sT[1]}
    s_add_u32 s0, s{sT[0]}, {WS_HID}
    s_add_u32 s1, s0, 4096
    s_sub_u32 s{sT[0]}, s{sJ}, 11
    s_cmp_lt_u32 s{sT[0]}, 4
    s_cselect_b32 s{sT[0]}, 0x7ff00000, 0
    v_add_u32 v7, s{sT[0]}, v31
    s_mul_i32 s{sT[0]}, s{sG}, 3
    s_cmp_eq_u32 s{sG}, 3
    s_cselect_b32 s{sT[0]}, 11, s{sT[0]}
    """)
    poll_prep(0)
def rotF(n, dst, base, mul):
    a(f"s_add_u32 s{dst}, s{sR2F}, {n}\ns_cmp_ge_u32 s{dst}, 22\ns_cselect_b32 s31, 22, 0\ns_sub_u32 s{dst}, s{dst}, s31\ns_mul_i32 s{dst}, s{dst}, {mul}\ns_add_u32 s{dst}, s{dst}, s{base}")
def w2half(n, i):
    slot = n % 11
    if i == 0:
        rotF(n, sT[2], sT[6], 16384)
        a(f"s_add_u32 m0, s{sE}, {slot*2048}" if slot < 2 else f"s_add_u32 m0, s{sLt}, {(slot-2)*2048}")
    a(f"buffer_load_dwordx4 v{253 if i else 248}, {srd(sW2)}, s{sT[2]} offen offset:{1024*i} lds", ("w", n))
def w2step(n): w2half(n, 0); w2half(n, 1)
def breadsF(n, dst):
    slot = n % 11
    for db in range(2):
        for u in range(2):
            va, off = (249 + db, slot*2048) if slot < 2 else (251 + db, (slot-2)*2048)
            a(f"ds_read_b64_tr_b16 {vr(dst+4*db+2*u,2)}, v{va} offset:{off + u*512}", ("b", n))
def readsF(n):
    c, s = n >> 2, n & 3
    a(f"ds_read_b128 {vr(32+4*(n&1),4)}, v{vXA+s} offset:{(c % NST)*16384}", ("r", n))
    for b in range(3):
        for u in range(2):
            a(f"ds_read_b64_tr_b16 {vr(wset(n)+4*b+2*u,2)}, v{vWA} offset:{(c % NST)*12288+s*3072+b*1024+u*256}", ("r", n))
def mfmaF(n, b):
    acc = vr(ACC1+16*b, 16)
    a(f"{MF} {acc}, {vr(wset(n)+4*b,4)}, {vr(32+4*(n&1),4)}, {'0' if n == 0 else acc}")
def extraF(c):
    n = c - 6
    return [lambda: w2half(n, 0), lambda: w2half(n, 1)]
def constF():
    a(f"v_lshlrev_b32 v16, 16, v{vST}\nv_rcp_f32 v14, v16\nv_mul_f32 v14, 0xbfb8aa3b, v14")
ev = {}
bgv = {}
def addev(n, f): (bgv if n >= 0 and OPT["bg"] else ev).setdefault(n, []).append(f)
addev(OPT["suF"], setupF); addev(OPT["suF"], lambda: commonB(3))
if OPT["rown"] >= 0: addev(OPT["rown"], row_load)
addev(OPT["statc"], stats); addev(OPT["tchn"], lambda: touches("F"))
addev(OPT["ldn"], lambda: gran_load("gran")); addev(OPT["chk"], lambda: gran_check(3, 0))
addev(OPT['chk'], constF); addev(24, lambda: flag_prep(0, sT[7]))
p1_loop(3, readsF, mfmaF, dmaF, extraF, ev, bgv, OPT['bgF'])
for b in range(3):
    acc = vr(ACC1+16*b, 16)
    a(f"{MF} {acc}, {vr(AUGW+4*b,4)}, {vr(AUGX,4)}, {acc}")
stamp("p1end")
wq = list(range(2, 11))
for _ in range(OPT["fe"]): w2step(wq.pop(0))
hq = [(n, i) for n in wq for i in range(2)]
for b in range(3):
    A = ACC1 + 16*b
    for f in range(2):
        z = 32 + 8*f
        o = 56 + 4*((2*b+f) & 1)
        for m in range(4):
            a(f"v_pk_mul_f32 {vr(z+2*m,2)}, {vr(A+8*f+2*m,2)}, v[14:15] op_sel_hi:[1,0]")
        for m in range(8): a(f"v_exp_f32 v{z+m}, v{z+m}")
        for m in range(4):
            a(f"v_pk_fma_f32 {vr(z+2*m,2)}, {vr(z+2*m,2)}, v[16:17], v[16:17] op_sel_hi:[1,0,0]")
        for m in range(8): a(f"v_rcp_f32 v{z+m}, v{z+m}")
        for m in range(4):
            a(f"v_pk_mul_f32 {vr(z+2*m,2)}, {vr(z+2*m,2)}, {vr(A+8*f+2*m,2)}")
        for m in range(4):
            a(f"v_cvt_pk_bf16_f32 v{o+m}, v{z+2*m}, v{z+2*m+1}")
        sg, imm = (0, b*2048 + f*1024) if b < 2 else (1, f*1024)
        a(f"buffer_store_dwordx4 {vr(o,4)}, v{31 if b < 2 else 7}, {srd(sWS)}, s{sg} offen offset:{imm} sc1", "hid_st")
        if not (b == 2 and f == 1):
            for _ in range(OPT["epd"]):
                if hq: w2half(*hq.pop(0))
    if b == 0: stamp("blk0"); a("s_barrier"); stamp("B2")
    if b == 1: stamp("blk1")
stamp("epi_done")
if hq and hq[0][1] == 1: w2half(*hq.pop(0))
wq = [n for n, i in hq if i == 0]
W = OPT["wF"]
flagged = False
drained = 0
for m in wq + list(range(11, 22)):
    if m - W >= 0: a.wait(vm=("w", m - W))
    if not flagged and "hid_st" not in a.vm:
        flag_store(sT[7]); flagged = True; stamp("flagst")
    while drained <= min(10, m - W):
        breadsF(drained, HELD + 8*drained); drained += 1
    if m >= 11: a.wait(lg=("b", m - 11))
    w2step(m)
    if m == OPT["pollm"]:
        assert drained == 11
        a("s_waitcnt lgkmcnt(0)"); poll_issue(5)
    if m in (12, 16): stamp(f"w{m}")
assert flagged and drained == 11
stamp("w2issued")
hid_voffs()
a(f"""
s_mul_i32 s{sT[4]}, s{sRB}, {2*KS*1024}
s_mul_i32 s{sT[2]}, s{sG}, {22*1024}
s_add_u32 s{sT[4]}, s{sT[4]}, s{sT[2]}
s_add_u32 s{sT[4]}, s{sT[4]}, {WS_HID}
""")
poll_check(5)
stamp("polled")
def resid_load():
    a(f"""
    v_lshrrev_b32 v232, 4, v0
    v_and_b32 v233, 15, v0
    v_bfe_u32 v234, v232, 2, 1
    v_lshrrev_b32 v235, 3, v232
    v_and_b32 v236, 3, v232
    v_lshl_add_u32 v236, v234, 4, v236
    v_lshl_add_u32 v236, v235, 2, v236
    v_lshlrev_b32 v234, 10, v236
    v_lshl_add_u32 v234, v233, 3, v234
    v_lshrrev_b32 v235, 3, v236
    v_and_b32 v237, 7, v236
    v_lshlrev_b32 v237, 3, v237
    v_lshl_add_u32 v235, v235, 7, v237
    s_lshl_b32 s{sT[0]}, s{sRB}, 16
    s_lshl_b32 s{sT[2]}, s{sNB}, 7
    s_add_u32 s{sT[0]}, s{sT[0]}, s{sT[2]}
    """)
    for m in range(4):
        if m: a(f"s_add_u32 s{sT[0]}, s{sT[0]}, {8192 if m & 1 else 24576}")
        a(f"buffer_load_dwordx2 {vr(216+2*m,2)}, v234, {srd(sX)}, s{sT[0]} offen", "res")
    a(f"s_lshl_b32 s{sT[0]}, s{sRB}, 10\ns_add_u32 s{sT[0]}, s{sT[0]}, {WS_STAT}")
    for m in range(4):
        a(f"buffer_load_dword v{224+m}, v235, {srd(sWS)}, s{sT[0]} offen offset:{(m&1)*128 + (m>>1)*512} sc1", "res")
    a(f"v_lshlrev_b32 v237, 3, v233\nv_add_u32 v237, s{sT[2]}, v237")
    a(f"global_load_dwordx2 v[228:229], v237, s[24:25]", "res")
p2_loop(22, 11, breadsF, lambda n: rotF(n, sT[9], sT[4], 1024), OPT["lag"], 8192, sLt, sLt, {-2*DA: [resid_load]})
stamp("dumped")
a(f"""
v_xor_b32 v17, v232, v233
v_and_b32 v17, 7, v17
v_lshlrev_b32 v17, 4, v17
v_lshl_add_u32 v12, v232, 7, v17
v_lshrrev_b32 v13, 3, v233
v_lshl_add_u32 v12, v13, 12, v12
v_add_u32 v13, {2*FLSZ}, v12
v_add_u32 v14, {L_SL}, v12
v_add_u32 v15, {L_SE}, v12
v_lshlrev_b32 v16, 11, v236
v_lshl_add_u32 v16, v233, 4, v16
s_lshl_b32 s{sT[0]}, s{sRB}, 17
s_lshl_b32 s{sT[1]}, s{sNB}, 8
s_add_u32 s{sT[4]}, s{sT[0]}, s{sT[1]}
""")
a.wait(vm="res")
a(f"v_lshlrev_b32 v20, 16, v228\nv_and_b32 v21, s{sMASK}, v228\nv_lshlrev_b32 v22, 16, v229\nv_and_b32 v23, s{sMASK}, v229")
OUTR = 32
for m in range(4):
    x, stt, o = 216 + 2*m, 224 + m, OUTR + 4*m
    a(f"""
    v_lshlrev_b32 v{o}, 16, v{x}
    v_and_b32 v{o+1}, s{sMASK}, v{x}
    v_lshlrev_b32 v{o+2}, 16, v{x+1}
    v_and_b32 v{o+3}, s{sMASK}, v{x+1}
    v_and_b32 v24, s{sMASK}, v{stt}
    v_lshlrev_b32 v25, 16, v{stt}
    v_rcp_f32 v25, v25
    """)
    for i in range(4): a(f"v_sub_f32 v{48+i}, v{o+i}, v24")
    def rnd():
        a("v_cvt_pk_bf16_f32 v52, v48, v49\nv_cvt_pk_bf16_f32 v53, v50, v51")
        a(f"v_lshlrev_b32 v48, 16, v52\nv_and_b32 v49, s{sMASK}, v52\nv_lshlrev_b32 v50, 16, v53\nv_and_b32 v51, s{sMASK}, v53")
    rnd()
    for i in range(4): a(f"v_mul_f32 v{48+i}, v{48+i}, v25")
    rnd()
    for i in range(4): a(f"v_mul_f32 v{48+i}, v{48+i}, v{20+i}")
    rnd()
    for i in range(4): a(f"v_add_f32 v{o+i}, v{o+i}, v{48+i}")
    if m == 3: stamp("resid"); a("s_waitcnt lgkmcnt(0)\ns_barrier"); stamp("B3")
def gather(fn, key, pk):
    for m in range(4):
        for q in range(4):
            base, off = fn(m, q)
            a(f"ds_read_b128 {vr(128+16*m+4*q,4)}, v{base} offset:{off}", (key, m))
    for m in range(4):
        o = OUTR + 4*m
        a.wait(lg=(key, m))
        for q in range(4):
            r = 128 + 16*m + 4*q
            if pk: a(f"v_pk_add_f32 {vr(o,2)}, {vr(o,2)}, {vr(r,2)}\nv_pk_add_f32 {vr(o+2,2)}, {vr(o+2,2)}, {vr(r+2,2)}")
            else:
                for i in range(4): a(f"v_add_f32 v{o+i}, v{o+i}, v{r+i}")
        if pk:
            if m: a(f"s_add_u32 s{sT[4]}, s{sT[4]}, {16384 if m & 1 else 49152}")
            a(f"buffer_store_dwordx4 {vr(o,4)}, v16, {srd(sOUT)}, s{sT[4]} offen" + ("", " sc1", " nt", " sc0 sc1")[OPT["osc"]])
gather(lambda m, q: (12 + (q >> 1), (q & 1)*FLSZ + (m >> 1)*8192 + (m & 1)*2048), "g1", False)
stamp("presum")
a("s_barrier")
stamp("B4")
gather(lambda m, q: (14 if m >> 1 else 15, q*8192 + (m & 1)*2048), "g2", True)
a(f"s_cmp_lg_u32 s2, 0xff\ns_cbranch_scc1 L_noep\ns_cmp_lg_u32 s{sW}, 0\ns_cbranch_scc1 L_noep")
a(f"v_mov_b32 v20, s{sTAG}\nv_mov_b32 v21, 0\ns_mov_b64 exec, 1")
a(f"buffer_store_dword v20, v21, {srd(sWS)}, 0 offen sc1")
a("s_mov_b64 exec, -1")
a.label("L_noep")
stamp("stissued")
finish()
emit_ool()

cur_stream[0] = "S"
a.restore(stC); a.vm = stS0[1] + common_ops
a.raw(".p2align 6")
a.label("L_S")
vLam, vK, vL16, vL128, vL256, vPW = 112, 114, 116, 118, 120, 122
vR, vU, vLB, vLA, vMH = 140, 192, 224, 232, 236
a(f"s_lshl_b32 s{sT[0]}, s{sG}, 12\ns_sub_u32 s{sT[0]}, {L_BW}, s{sT[0]}")
for s in range(4): a(f"v_add_u32 v{vBA+s}, s{sT[0]}, v{vXA+s}")
def setupS1():
    zrot()
    a(f"""
    s_and_b32 s{sR2S}, s{sT[0]}, 2
    s_and_b32 s{sT[1]}, s{sT[0]}, 4
    s_lshl_b32 s{sT[1]}, s{sT[1]}, 1
    s_or_b32 s{sR2S}, s{sR2S}, s{sT[1]}
    s_and_b32 s{sT[1]}, s{sT[0]}, 1
    s_lshl_b32 s{sT[1]}, s{sT[1]}, 2
    s_or_b32 s{sR2S}, s{sR2S}, s{sT[1]}
    s_mul_i32 s{sR2S}, s{sR2S}, {OPT['rot2']}
    s_bitcmp1_b32 s{sR2S}, 1
    s_cselect_b32 s{sC0}, s20, s18
    s_cselect_b32 s{sC0+1}, s21, s19
    s_cselect_b32 s{sC1}, s18, s20
    s_cselect_b32 s{sC1+1}, s19, s21
    s_mov_b32 s{sC0+2}, 0x80000
    s_mov_b32 s{sC0+3}, 0x20000
    s_mov_b32 s{sC1+2}, 0x80000
    s_mov_b32 s{sC1+3}, 0x20000
    """)
    a(f"""
    v_lshrrev_b32 v248, 3, v{vL}
    v_lshl_add_u32 v248, v248, 10, v27
    v_xor_b32 v249, 64, v248
    s_lshl_b32 s{sE}, s{sG}, 13
    s_add_u32 s{sLt}, s{sE}, {L_SL}
    s_add_u32 s{sE}, s{sE}, {L_SE}
    s_and_b32 s{sT[0]}, s{sR2S}, 4
    v_xor_b32 v{vTmp}, v{vH}, v{vF}
    v_xor_b32 v{vTmp}, s{sT[0]}, v{vTmp}
    v_lshlrev_b32 v{vTmp}, 4, v{vTmp}
    v_lshl_add_u32 v{vTmp}, v{vI}, 7, v{vTmp}
    v_add_u32 v250, s{sE}, v{vTmp}
    v_xor_b32 v251, 32, v250
    v_xor_b32 v252, 64, v250
    v_xor_b32 v253, 0x60, v250
    v_add_u32 v{vLA}, s{sLt}, v{vTmp}
    v_xor_b32 v{vLA+1}, 32, v{vLA}
    v_xor_b32 v{vLA+2}, 64, v{vLA}
    v_xor_b32 v{vLA+3}, 0x60, v{vLA}
    s_lshl_b32 s0, s{sNB}, 16
    s_lshl_b32 s{sT[0]}, s{sG}, 8
    s_add_u32 s0, s0, s{sT[0]}
    s_lshr_b32 s{sT[0]}, s{sR2S}, 3
    s_lshl_b32 s{sT[0]}, s{sT[0]}, 7
    s_add_u32 s0, s0, s{sT[0]}
    s_xor_b32 s1, s0, 128
    v_sub_u32 v{vMH}, s{sMB}, v{vH}
    v_subrev_u32 v{vMH}, 1, v{vMH}
    v_lshlrev_b32 v{vTmp}, 4, v{vI}
    v_lshl_add_u32 v{vTmp}, v{vMH}, 13, v{vTmp}
    v_mov_b32 v{vTmp2}, 0x7ff00000
    """)
    for i in range(8):
        a(f"v_subrev_u32 v{vLB+i}, {i*16384}, v{vTmp}")
        a(f"v_cmp_le_i32 vcc, {2*i}, v{vMH}\nv_cndmask_b32 v{vLB+i}, v{vTmp2}, v{vLB+i}, vcc")
def setupS2():
    a(f"""
    v_lshlrev_b32 v237, 3, v{vI}
    v_add_u32 v237, {L_SEG}, v237
    s_lshl_b32 s{sT[0]}, s{sG}, 9
    v_lshl_add_u32 v238, v{vL}, 3, s{sT[0]}
    v_add_u32 v238, {L_SEG}, v238
    s_cmp_eq_u32 s{sG}, 0
    s_cselect_b32 s{sT[1]}, 0, 0x7ff00000
    v_add_u32 v239, s{sT[1]}, v31
    s_lshl_b32 s{sT[0]}, s{sG}, 1
    v_add_u32 v240, s{sT[0]}, v{vH}
    v_lshlrev_b32 v241, 6, v{vI}
    v_lshl_add_u32 v241, v{vH}, 5, v241
    v_add_u32 v241, s{sLt}, v241
    v_bfe_u32 v{vTmp}, v{vL}, 2, 2
    v_lshl_add_u32 v242, v{vH}, 3, v{vTmp}
    v_lshlrev_b32 v242, 6, v242
    v_and_b32 v{vTmp}, 1, v{vL}
    v_lshl_add_u32 v242, v{vTmp}, 5, v242
    v_bfe_u32 v{vTmp}, v{vL}, 4, 1
    v_lshl_add_u32 v242, v{vTmp}, 4, v242
    v_bfe_u32 v{vTmp}, v{vL}, 1, 1
    v_lshl_add_u32 v242, v{vTmp}, 3, v242
    v_add_u32 v242, s{sLt}, v242
    s_lshl_b32 s{sT[0]}, s{sG}, 7
    s_add_u32 s{sT[0]}, s{sT[0]}, {L_RB}
    v_lshl_add_u32 v243, v{vTI}, 2, s{sT[0]}
    v_lshl_add_u32 v244, v{vH}, 6, s{sT[0]}
    v_mov_b32 v124, 0
    v_mov_b32 v125, 0
    s_lshl_b32 s{sT[1]}, s{sJ}, 9
    s_add_u32 s28, s{sT[1]}, {WS_EGR}
    s_lshl_b32 s{sT[0]}, s{sMB}, 13
    s_add_u32 s29, s{sT[0]}, s28
    s_lshl_b32 s{sT[0]}, s{sMB}, 2
    s_add_u32 s{sT[0]}, s{sT[0]}, s{sG}
    s_mul_i32 s{sT[0]}, s{sT[0]}, {KS*1024}
    s_lshl_b32 s{sT[1]}, s{sJ}, 12
    s_add_u32 s{sT[0]}, s{sT[0]}, s{sT[1]}
    s_add_u32 s30, s{sT[0]}, {WS_HID + KF*1024}
    s_lshl_b32 s{sT[0]}, s{sG}, 2
    """)
    poll_prep(1)
def cdma(r, part, i):
    a(f"s_add_u32 m0, s{sLt if part else sE}, {i*1024}\ns_add_u32 s31, s{r}, {i*8192}")
    a(f"buffer_load_dwordx4 v{248+(i&1)}, {srd(sC1 if part else sC0)}, s31 offen lds", ("w", r, part))
def breadsS(n, dst):
    jl, part, half = (n >> 2) & 1, (n >> 1) & 1, n & 1
    for db in range(2):
        a(f"ds_read_b128 {vr(dst+4*db,4)}, v{(vLA if part else 250)+2*jl+half} offset:{db*4096}", ("b", n))
def params():
    a.wait(vm="par")
    a(f"""
    v_lshlrev_b32 v150, 16, v150
    v_lshlrev_b32 v151, 16, v151
    v_lshlrev_b32 v152, 16, v152
    v_mul_f32 v152, 0x3fb8aa3b, v152
    v_exp_f32 v152, v152
    v_cvt_pk_bf16_f32 v152, v152, v152
    v_lshlrev_b32 v152, 16, v152
    v_mul_f32 v153, v152, v150
    v_mul_f32 v154, v152, v151
    v_mul_f32 v153, 0x3fb8aa3b, v153
    v_exp_f32 v153, v153
    v_mul_f32 v154, 0.15915494, v154
    v_rndne_f32 v155, v154
    v_sub_f32 v154, v154, v155
    v_cos_f32 v155, v154
    v_sin_f32 v146, v154
    v_mul_f32 v{vLam}, v153, v155
    v_mul_f32 v{vLam+1}, v153, v146
    v_add_f32 v153, -1.0, v{vLam}
    v_mul_f32 v154, v150, v150
    v_fmac_f32 v154, v151, v151
    v_rcp_f32 v154, v154
    v_mul_f32 v155, v153, v150
    v_fmac_f32 v155, v{vLam+1}, v151
    v_mul_f32 v146, v{vLam+1}, v150
    v_fma_f32 v146, -v153, v151, v146
    v_add_f32 v154, v154, v154
    v_mul_f32 v{vK}, v155, v154
    v_mul_f32 v{vK+1}, v146, v154
    """)
    cmuls(150, vLam, vLam); cmuls(152, 150, 150); cmuls(150, 152, 152); cmuls(vL16, 150, 150)
    cmuls(150, vL16, vL16); cmuls(152, 150, 150)
    cmuls(vL128, 152, 152); cmuls(vL256, vL128, vL128)
    a(f"""
    v_cmp_gt_u32 vcc, 32, v{vL}
    v_cndmask_b32 v154, v{vL16}, 1.0, vcc
    v_cndmask_b32 v155, v{vL16+1}, 0, vcc
    s_bitcmp1_b32 s{sG}, 0
    s_cselect_b64 vcc, -1, 0
    v_cndmask_b32 v150, 1.0, v150, vcc
    v_cndmask_b32 v151, 0, v151, vcc
    s_bitcmp1_b32 s{sG}, 1
    s_cselect_b64 vcc, -1, 0
    v_cndmask_b32 v152, 1.0, v152, vcc
    v_cndmask_b32 v153, 0, v153, vcc
    """)
    cmuls(144, 154, 150); cmuls(vPW, 144, 152)
    stamp("params")
def readsS(n):
    c, s = n >> 2, n & 3
    a(f"ds_read_b128 {vr(32+4*(n&1),4)}, v{vXA+s} offset:{(c % NST)*16384}", ("r", n))
    for b in range(2):
        a(f"ds_read_b128 {vr(wset(n)+4*b,4)}, v{vBA+s} offset:{(c % NST)*8192+b*4096}", ("r", n))
def mfmaS(n, b):
    acc = vr(ACC1+16*b, 16)
    a(f"{MF} {acc}, {vr(32+4*(n&1),4)}, {vr(wset(n)+4*b,4)}, {'0' if n == 0 else acc}")
def extraS(c):
    return [(lambda i=i: cdma(0, 0, i)) for i in range(4*(c-6), 4*(c-6)+4)]
def rwrite():
    a(f"v_lshlrev_b32 v23, 16, v{vST}\nv_rcp_f32 v23, v23")
    a("ds_write_b32 v243, v23", "csw")
def rread():
    a.wait(lg="csw")
    for q in range(4): a(f"ds_read_b128 {vr(vR+4*q,4)}, v244 offset:{16*q}", "cs")
ev = {}; bgv = {}
addev(OPT["suS1"], setupS1); addev(OPT["suS2"], lambda: commonB(2)); addev(OPT["suS2"], setupS2); addev(OPT["parl"], par_load); addev(OPT["parn"], params)
addev(OPT["tchn"], lambda: touches("S"))
addev(OPT["ldn"], lambda: gran_load("gran")); addev(OPT["chk"], lambda: gran_check(2, 1)); addev(OPT["chk"], rwrite)
addev(OPT['chk'] + 1, rread); addev(24, lambda: flag_prep(1, sT[7]))
if OPT["prio"]: ev[30] = [lambda: a("s_setprio 2")]
p1_loop(2, readsS, mfmaS, dmaS, extraS, ev, bgv, OPT['bgS'])
for b in range(2):
    acc = vr(ACC1+16*b, 16)
    a(f"{MF} {acc}, {vr(AUGX,4)}, {vr(AUGW+4*b,4)}, {acc}")
stamp("p1end")
cq = [(0, 1, i) for i in range(8)]
for _ in range(OPT["se"]): cdma(*cq.pop(0))
a(f"v_mov_b32 v74, s{sTAG}\nv_mov_b32 v75, s{sTAG}")
for t in range(16):
    e, o = t & ~1, t & 1
    a(f"v_pk_mul_f32 {vr(vU+2*t,2)}, {vr(vK,2)}, {vr(ACC1+e,2)} op_sel:[0,{o}] op_sel_hi:[1,{o}]")
cur = vU
for t in range(16):
    e, o = t & ~1, t & 1
    a(f"v_pk_fma_f32 {vr(vU+2*t,2)}, {vr(vK,2)}, {vr(ACC1+16+e,2)}, {vr(vU+2*t,2)} op_sel:[1,{o},0] op_sel_hi:[0,{o},1] neg_lo:[1,0,0]")
    a(f"v_pk_mul_f32 {vr(vU+2*t,2)}, {vr(vU+2*t,2)}, {vr(vR+e,2)} op_sel:[0,{o}] op_sel_hi:[1,{o}]")
    if t:
        d = 48 + 2*(t & 1)
        cfma(d, vLam, cur, vU + 2*t, 52)
        cur = d
a(f"ds_write_b64 v238, {vr(cur,2)}\ns_waitcnt lgkmcnt(0)")
stamp("pass1")
a("s_barrier")
for sgi in range(8): a(f"ds_read_b64 {vr(56+2*sgi,2)}, v237 offset:{256*sgi}", ("seg", sgi))
cur = 56
for jx in range(1, 8):
    d = 32 + 2*jx if jx < 7 else 72
    a.wait(lg=("seg", jx))
    cfma(d, vL16, cur, 56 + 2*jx, 56 + 2*jx)
    cur = d
a("s_mov_b32 exec_hi, 0")
a(f"buffer_store_dwordx4 v[72:75], v239, {srd(sWS)}, s29 offen sc1", "e_st")
a("s_mov_b64 exec, -1")
if OPT["prio"]: a("s_setprio 0")
stamp("Epub")
for jx in range(1, 8):
    src = 56 if jx == 1 else 32 + 2*(jx-1)
    a(f"v_cmp_eq_u32 vcc, {jx}, v240\nv_cndmask_b32 v124, v124, v{src}, vcc\nv_cndmask_b32 v125, v125, v{src+1}, vcc")
a.wait(vm=("w", 0, 0))
for n in (0, 1, 4, 5): breadsS(n, HELD + 8*n)
cq += [(1, 0, i) for i in range(8)]
for _ in range(OPT["n1S"]):
    a(f"s_waitcnt vmcnt(4)")
    if cq[0] == (1, 0, 0): a("s_waitcnt lgkmcnt(0)")
    cdma(*cq.pop(0))
if OPT["prio"]: a("s_setprio 2")
stamp("lbissue")
top, done = newlabel("lb"), newlabel("lbd")
a(f"s_mov_b32 s{sT[3]}, {SPIN}")
a.label(top)
for i in range(8):
    a(f"buffer_load_dwordx4 {vr(48+4*i,4)}, v{vLB+i}, {srd(sWS)}, s28 offen sc1")
a("s_waitcnt vmcnt(0) lgkmcnt(0)\ns_mov_b64 s[32:33], 0")
for i in range(8):
    a(f"v_cmp_ne_u32 vcc, s{sTAG}, v{48+4*i+2}\nv_cmp_le_i32 s[8:9], {2*i}, v{vMH}\ns_and_b64 vcc, vcc, s[8:9]\ns_or_b64 s[32:33], s[32:33], vcc")
a(f"s_cbranch_scc0 {done}")
a(f"s_sleep {OPT['lsleep']}\ns_sub_u32 s{sT[3]}, s{sT[3]}, 1\ns_cmp_lg_u32 s{sT[3]}, 0\ns_cbranch_scc1 {top}")
a.label(done)
stamp("lookback")
late_loaded = not any(q[:2] == (0, 1) for q in cq)
early_used = sum(1 for i in range(8) if (1, 0, i) not in cq)
cur = 48 + 4*7
for i in range(6, -1, -1):
    cfma(48 + 4*i, vL256, cur, 48 + 4*i, 48 + 4*i)
    cur = 48 + 4*i
a("v_mov_b32 v52, v48\nv_mov_b32 v53, v49")
a("v_permlane32_swap_b32 v48, v52\nv_permlane32_swap_b32 v49, v53")
cfma(56, vL128, 52, 48, 56)
cfma(58, vPW, 56, 124, 58)
cur = 58
for t in range(16):
    cfma(vU + 2*t, vLam, cur, vU + 2*t, vU + 2*t)
    cur = vU + 2*t
    if t & 1:
        m = t >> 1
        a(f"v_cvt_pk_bf16_f32 v{32+m}, v{vU+4*m}, v{vU+4*m+2}")
        a(f"v_cvt_pk_bf16_f32 v{40+m}, -v{vU+4*m+1}, -v{vU+4*m+3}")
assert early_used <= 4
SCR = (L_SE - L_SL) + 4096
a(f"""
ds_write_b128 v241, v[32:35] offset:{SCR}
ds_write_b128 v241, v[36:39] offset:{SCR+16}
ds_write_b128 v241, v[40:43] offset:{SCR+2048}
ds_write_b128 v241, v[44:47] offset:{SCR+2064}
s_waitcnt lgkmcnt(0)
""")
for f in range(4):
    for u in range(2):
        a(f"ds_read_b64_tr_b16 {vr(48+4*f+2*u,2)}, v242 offset:{SCR + f*1024 + u*256}", ("t", f))
for f in range(4):
    a.wait(lg=("t", f))
    a(f"buffer_store_dwordx4 {vr(48+4*f,4)}, v31, {srd(sWS)}, s30 offen offset:{f*1024} sc1", "hid_st")
stamp("hidst")
flagged = False; drained = False
cq += [(1, 1, i) for i in range(8)]
while cq:
    q = cq.pop(0)
    if len(a.vm) > 4: a("s_waitcnt vmcnt(4)")
    if not flagged and "hid_st" not in a.vm:
        flag_store(sT[7]); flagged = True; stamp("flagst")
        if OPT["prio"]: a("s_setprio 0")
    if q[:2] == (1, 1) and not drained:
        a.wait(vm=("w", 0, 1))
        for n in (2, 3, 6, 7): breadsS(n, HELD + 8*n)
        a("s_waitcnt lgkmcnt(0)"); drained = True
    cdma(*q)
    if q == (1, 1, 3): poll_issue(4)
assert flagged
stamp("cissued")
hid_voffs()
a(f"""
s_mul_i32 s{sT[4]}, s{sRB}, {2*KS*1024}
s_lshl_b32 s{sT[2]}, s{sG}, 14
s_add_u32 s{sT[4]}, s{sT[4]}, s{sT[2]}
s_add_u32 s{sT[4]}, s{sT[4]}, {WS_HID + KF*1024}
""")
poll_check(4)
stamp("polled")
def aoffS(n):
    a(f"s_xor_b32 s{sT[9]}, s{sR2S}, {n}\ns_lshl_b32 s{sT[9]}, s{sT[9]}, 10\ns_add_u32 s{sT[9]}, s{sT[9]}, s{sT[4]}")
p2_loop(16, 8, breadsS, aoffS, OPT["lag"], 0, sE, sLt, {-2*OPT["b3"]: [lambda: (a("s_barrier"), stamp("B3"))]})
a("s_waitcnt lgkmcnt(0)")
stamp("dumped")
a("s_barrier")
finish()
emit_ool()
a.label("L_end")
a("s_endpgm")
if STAMPS: a.raw("; STAMPNAMES " + repr(stamp_names))
a.raw(f""".section .rodata,"a"
.p2align 6
.amdhsa_kernel {NAME}_kernel
  .amdhsa_next_free_vgpr 256
  .amdhsa_next_free_sgpr 102
  .amdhsa_accum_offset 256
  .amdhsa_group_segment_fixed_size 0
  .amdhsa_kernarg_size 120
  .amdhsa_user_sgpr_count 2
  .amdhsa_user_sgpr_kernarg_segment_ptr 1
  .amdhsa_system_sgpr_workgroup_id_x 1
.end_amdhsa_kernel""")
open(sys.argv[1], "w").write(a.text())
print("lines", len(a.lines), "nops", a.nnop, "duty", DUTY, file=sys.stderr)
```
